```python
import torch

def _softmax(x, axis=-1):
    return torch.softmax(x, dim=axis)
def _gelu(x):
    return torch.nn.functional.gelu(x, approximate="tanh")
def _silu(x):
    return torch.nn.functional.silu(x)
def _sigmoid(x):
    return torch.sigmoid(x)
def _layernorm(x, axis=-1, eps=1e-5):
    m = x.mean(dim=axis, keepdim=True)
    v = x.var(dim=axis, keepdim=True, unbiased=False)
    return (x - m) / torch.sqrt(v + eps)
def _scatter_add(tgt, idx, src, axis=0):
    return tgt.clone().index_add_(axis, idx, src)
def _segment_sum(src, seg, n):
    out = torch.zeros((n,) + src.shape[1:], dtype=src.dtype)
    return out.index_add_(0, seg, src)
def _pad(x, pw):
    flat = tuple(v for pair in reversed(pw) for v in pair)
    return torch.nn.functional.pad(x, flat)

kernel_name = 'gated_mix__compressed_kv_cla__swiglu_ffn__decode'

def setup_inputs():

    _w = (lambda a: (lambda t: t.to(torch.bfloat16) if t.is_floating_point() else t)(torch.as_tensor(a)))
    def _A_setup():
        B, H, Sq, Sk, D, M = 2, 32, 1, 4096, 128, 640
        Dc = 4 * D
        return {
            "x": _w((lambda *s: torch.randn(*s, dtype=torch.bfloat16) * 0.05)(B, Sq, M)),
            "c_kv": _w((lambda *s: torch.randn(*s, dtype=torch.bfloat16) * 0.8)(B, Sk, Dc)),
            "w_q": _w((lambda *s: torch.randn(*s, dtype=torch.bfloat16) * 6.4)(M, H, D) * (M ** -0.5)),
            "w_uk": _w((lambda *s: torch.randn(*s, dtype=torch.bfloat16) * 6.4)(Dc, H, D) * (Dc ** -0.5)),
            "w_uv": _w((lambda *s: torch.randn(*s, dtype=torch.bfloat16) * 0.8)(Dc, H, D) * (Dc ** -0.5)),
            "w_o": _w((lambda *s: torch.randn(*s, dtype=torch.bfloat16) * 0.8)(H, D, M) * ((H * D) ** -0.5)),
        }
    _A_in = _A_setup()

    def _B_setup():
        B, S, D, F = 2, 1, 640, 1728
        return {
            "x": _w((lambda *s: torch.randn(*s, dtype=torch.bfloat16) * 0.05)(B, S, D)),
            "w_gate": _w((lambda *s: torch.randn(*s, dtype=torch.bfloat16) * 0.1)(D, F)),
            "w_up": _w((lambda *s: torch.randn(*s, dtype=torch.bfloat16) * 0.1)(D, F)),
            "w_down": _w((lambda *s: torch.randn(*s, dtype=torch.bfloat16) * 0.1)(F, D)),
        }
    _B_in = _B_setup()

    return {
        "A_x": _A_in["x"],
        "A_c_kv": _A_in["c_kv"],
        "A_w_q": _A_in["w_q"],
        "A_w_uk": _A_in["w_uk"],
        "A_w_uv": _A_in["w_uv"],
        "A_w_o": _A_in["w_o"],
        "B_x": _B_in["x"],
        "B_w_gate": _B_in["w_gate"],
        "B_w_up": _B_in["w_up"],
        "B_w_down": _B_in["w_down"],
        "gate_w": _w((lambda *s: torch.randn(*s, dtype=torch.bfloat16) * 0.1)(640) * 16.0),
    }

def reference(A_x, A_c_kv, A_w_q, A_w_uk, A_w_uv, A_w_o, B_x, B_w_gate, B_w_up, B_w_down, gate_w):
    def _A_ref(x, c_kv, w_q, w_uk, w_uv, w_o):
        B, Sq, M = x.shape[0], x.shape[1], x.shape[2]
        Sk = c_kv.shape[1]
        H, D = w_q.shape[1], w_q.shape[2]
        q = torch.einsum("bqm,mhd->bhqd", x, w_q)
        k = torch.einsum("bkc,chd->bhkd", c_kv, w_uk)
        v = torch.einsum("bkc,chd->bhkd", c_kv, w_uv)
        scores = torch.einsum("bhqd,bhkd->bhqk", q, k) * (D ** -0.5)
        off = Sk - Sq
        qi = torch.arange(Sq)[:, None]
        kj = torch.arange(Sk)[None, :]
        cmask = kj <= (qi + off)
        scores = torch.where(cmask[None, None], scores, -1e9)
        p = _softmax(scores, axis=-1)
        ctx = torch.einsum("bhqk,bhkd->bhqd", p, v)
        return torch.einsum("bhqd,hdm->bqm", ctx, w_o)

    def _B_ref(x, w_gate, w_up, w_down):
        g = _silu(x @ w_gate)
        u = x @ w_up
        return (g * u) @ w_down

    x = A_x
    g = _sigmoid((x * gate_w).sum(-1, keepdims=True))
    a = _A_ref(x, A_c_kv, A_w_q, A_w_uk, A_w_uv, A_w_o)
    b = _B_ref(x, B_w_gate, B_w_up, B_w_down)
    return g * a + (1 - g) * b
```

```python
import re

_REG = re.compile(r'^(-|abs\()?([vas])(?:(\d+)|\[(\d+):(\d+)\])\)?$')
TRANS = ("v_exp_f32", "v_log_f32", "v_rcp_f32", "v_rsq_f32", "v_sqrt_f32", "v_sin_f32", "v_cos_f32")

def regs_of(op):
    op = op.strip()
    if op == "vcc": return {("s", 106), ("s", 107)}
    if op == "exec": return {("s", 126), ("s", 127)}
    if op == "m0": return {("s", 124)}
    m = _REG.match(op)
    if not m: return set()
    f = m.group(2)
    if m.group(3) is not None: return {(f, int(m.group(3)))}
    return {(f, i) for i in range(int(m.group(4)), int(m.group(5)) + 1)}

def split_ops(s):
    out, depth, cur = [], 0, ""
    for ch in s:
        if ch in "[(": depth += 1
        if ch in "])": depth -= 1
        if ch == "," and depth == 0:
            out.append(cur.strip()); cur = ""
        else: cur += ch
    if cur.strip(): out.append(cur.strip())
    return out

class Ins:
    def __init__(self, text):
        self.text = text
        t = text.split(";")[0].strip()
        self.is_label = t.endswith(":")
        self.is_dir = t.startswith(".") or t == ""
        self.mn = t.split()[0] if t else ""
        rest = t[len(self.mn):].strip()
        ops = split_ops(rest)
        clean = []
        self.mods = ""
        for i, o in enumerate(ops):
            parts = o.split()
            if len(parts) > 1 and not o.startswith("hwreg") :
                clean.append(parts[0]); self.mods += " " + " ".join(parts[1:])
            else: clean.append(o)
        self.ops = clean
        mn = self.mn
        self.kind = "other"
        W, R = set(), set()
        r = [regs_of(o) for o in clean]
        self.srcC = set(); self.srcAB = set()
        if self.is_label or self.is_dir: pass
        elif mn.startswith("v_mfma"):
            self.kind = "mfma"; W = r[0]; self.srcAB = r[1] | r[2]; self.srcC = r[3]; R = self.srcAB | self.srcC
            self.passes = 8 if "32x32" in mn else 4
        elif mn.startswith("v_"):
            self.kind = "valu"
            if mn.startswith("v_permlane") and "swap" in mn:
                W = r[0] | r[1]; R = r[0] | r[1]
            elif mn.startswith("v_cmp"):
                W = r[0]; R = set().union(*r[1:])
                if mn.startswith("v_cmpx"): W = W | regs_of("exec")
            elif mn.startswith(("v_add_co", "v_sub_co", "v_addc_co", "v_subb_co")):
                W = r[0] | r[1]; R = set().union(*r[2:])
            else:
                W = r[0]; R = set().union(*r[1:]) if len(r) > 1 else set()
                if mn.startswith(("v_fmac", "v_dot2c", "v_pk_fmac")): R = R | r[0]
                if "dpp" in mn or "row_" in self.mods or "quad_perm" in self.mods: R = R | r[0]
        elif mn.startswith("ds_"):
            self.kind = "ds"
            if mn.startswith(("ds_read", "ds_bpermute", "ds_permute", "ds_swizzle")):
                W = r[0]; R = set().union(*r[1:])
            else: R = set().union(*r)
        elif mn.startswith(("buffer_", "global_")):
            self.kind = "vmem"
            is_lds = " lds" in (" " + self.mods + " ") or "_lds_" in mn
            self.is_lds = is_lds
            if "load" in mn and not is_lds:
                W = r[0]; R = set().union(*r[1:])
            else:
                R = set().union(*r)
                if is_lds: R = R | regs_of("m0")
            self.wide_store = ("store" in mn) and (mn.endswith("x4") or mn.endswith("x3"))
            if self.wide_store:
                self.store_data = r[0] if mn.startswith("buffer") else r[1]
        elif mn.startswith("s_"):
            self.kind = "salu"
            if mn.startswith(("s_cmp", "s_cbranch", "s_branch", "s_waitcnt", "s_nop", "s_barrier", "s_endpgm", "s_setprio", "s_sleep", "s_bitcmp")):
                R = set().union(*r) if r else set()
            else:
                W = r[0] if r else set(); R = set().union(*r[1:]) if len(r) > 1 else set()
                if "saveexec" in mn: W = W | regs_of("exec")
        self.W, self.R = W, R
        self.is_dpp = self.kind == "valu" and ("dpp" in mn or "row_" in self.mods or "quad_perm" in self.mods)
        self.is_trans = mn.replace("_e32", "").replace("_e64", "") in TRANS
    def states(self):
        if self.is_label or self.is_dir: return 0
        if self.mn == "s_nop": return int(self.ops[0], 0) + 1
        return 1

def need(prev, cur):
    n = 0
    vW = {x for x in prev.W if x[0] in "va"}
    sW = {x for x in prev.W if x[0] == "s"}
    if prev.kind == "valu":
        if cur.kind == "mfma" and (vW & cur.R): n = max(n, 2)
        if cur.kind == "mfma" and (regs_of("exec") & sW): n = max(n, 4)
        if cur.kind == "valu":
            if cur.is_dpp and (vW & cur.R): n = max(n, 2)
            if cur.is_dpp and (regs_of("exec") & sW): n = max(n, 5)
            if cur.mn.startswith("v_permlane") and (vW & cur.R): n = max(n, 2)
            if cur.mn.startswith("v_permlane") and (regs_of("exec") & sW): n = max(n, 4)
            if cur.mn.startswith(("v_readfirstlane", "v_readlane")) and (vW & cur.R): n = max(n, 1)
            if cur.mn.startswith(("v_readfirstlane", "v_readlane", "v_writelane")) and (regs_of("exec") & sW): n = max(n, 4)
            if sW & cur.R: n = max(n, 4 if cur.mn.startswith(("v_readlane", "v_writelane")) else 2)
            if cur.mn.startswith("v_cndmask") and len(cur.ops) == 3 and (sW & regs_of("vcc")): n = max(n, 2)
            if prev.is_trans and not cur.is_trans and (vW & cur.R): n = max(n, 1)
            if prev.mn.startswith("v_dot") :
                if cur.mn == prev.mn:
                    pass
                elif (vW & (cur.R | cur.W)): n = max(n, 3)
        if prev.is_trans and cur.kind in ("ds", "vmem", "mfma") and (vW & cur.R): n = max(n, 1)
        if prev.mn.startswith("v_dot") and cur.kind in ("ds", "vmem", "mfma") and (vW & cur.R): n = max(n, 3)
        if cur.kind == "vmem" and (sW & cur.R): n = max(n, 5)
    if prev.kind == "mfma":
        p = prev.passes
        big = {4: 8, 8: 12}[p]
        if cur.kind == "mfma":
            if vW & cur.srcAB: n = max(n, big)
            if vW & cur.srcC:
                if not (vW == cur.srcC and cur.passes == p): n = max(n, {4: 6, 8: 10}[p])
            elif vW & cur.W: n = max(n, big)
        elif cur.kind in ("valu", "ds", "vmem"):
            if vW & (cur.R | cur.W): n = max(n, big)
            if cur.kind == "valu" and (prev.srcC & cur.W): n = max(n, {4: 3, 8: 7}[p])
    if prev.kind == "salu":
        if cur.kind == "vmem" and getattr(cur, "is_lds", False) and (regs_of("m0") & prev.W): n = max(n, 1)
    if prev.kind == "vmem" and getattr(prev, "wide_store", False):
        if prev.store_data & cur.W: n = max(n, 2)
    return n

class Asm:
    def __init__(self):
        self.lines = []
    def __call__(self, text):
        for l in text.split("\n"):
            l = l.strip()
            if l: self.lines.append(l)
    def label(self, name): self.lines.append(name + ":")
    def finish(self):
        out = []
        hist = []
        for l in self.lines:
            ins = Ins(l)
            if ins.is_label or ins.is_dir or l.startswith(";"):
                out.append(l); continue
            req = 0; dist = 0
            for p in reversed(hist[-24:]):
                nd = need(p, ins)
                if nd - dist > req: req = nd - dist
                dist += p.states()
                if dist > 16: break
            if req > 0:
                nop = Ins(f"s_nop {req-1}")
                out.append(f"s_nop {req-1}"); hist.append(nop)
            out.append(l); hist.append(ins)
        return "\n".join(("    " + x if not (x.endswith(":") or x.startswith(".") or x.startswith(";")) else x) for x in out) + "\n"
```

```python
import sys, math
from asmlib import Asm
K = "gated_mix__compressed_kv_cla__swiglu_ffn__decode_kernel"

WS_EPOCH = 0x0
WS_H1 = 0x10000
WS_H2 = 0x40000
WS_ST = 0x60000
WS_HF = 0x70000
WS_H4 = 0x90000
WS_H5 = 0x100000
WS_H3 = 0x200000
WS_STAMP = 0x800000
CKV_STRIDE = 1040
L_QA = 128 * CKV_STRIDE
L_MAX = L_QA + 16384
L_SUM = L_MAX + 256
L_P = L_SUM + 256
L_G = L_P + 4096
L_ACT = L_G + 64
LDS_A_END = L_ACT + 1024
UV_BS = 1024 + 32
L_UV = 0
L_QW = 40960
L_FW = L_QW + 2048
L_LAT = L_FW + 512
L_FIN = L_LAT + 1024
LDS_BYTES = (LDS_A_END + 255) // 256 * 256
CODE_PAD = 16384
NPF = CODE_PAD // 128 // 8

SCALE = (128 ** -0.5) * math.log2(math.e)
import struct
def f32(x): return "0x%08x" % struct.unpack("<I", struct.pack("<f", x))[0]

HEADER = open("gated_mix__compressed_kv_cla__swiglu_ffn__decode.s.ref").read().split("; @launch")[0]

def gen(profile=False):
    a = Asm()
    nstamp = [0]
    def stamp(i):
        if profile: a(f"s_memrealtime s[{70+2*i}:{71+2*i}]")
    sWV, sX, sU, sH, sJ = "s3", "s4", "s5", "s6", "s7"
    X, WS, SA, SB, SC, SD = "s[8:11]", "s[12:15]", "s[16:19]", "s[20:23]", "s[24:27]", "s[28:31]"
    sTag, sE, sSpin = "s36", "s37", "s38"
    sP0, sP1, sP2, sU0, sU1 = "s60", "s61", "s62", "s63", "s64"
    vL, vC, vG = "v1", "v2", "v3"
    selE = [f"v{32+r}" for r in range(4)]; selO = [f"v{36+r}" for r in range(4)]

    def srd_consts(base, nbytes):
        a(f"s_mov_b32 s{base+2}, {nbytes}"); a(f"s_mov_b32 s{base+3}, 0x00020000")
    def make_sels(t0="v4", t1="v5", t2="v6", t3="v7"):
        a(f"v_and_b32 {t0}, 1, {vC}")
        a(f"v_lshlrev_b32 {t0}, 4, {t0}")
        a(f"v_mov_b32 {t1}, 0x0c0c0100"); a(f"v_mov_b32 {t2}, 0x0c0c0302"); a(f"v_mov_b32 {t3}, 0x0c0c0c0c")
        a(f"v_alignbit_b32 {t1}, {t1}, {t1}, {t0}")
        a(f"v_alignbit_b32 {t2}, {t2}, {t2}, {t0}")
        a(f"v_bfe_u32 {t0}, {vC}, 1, 2")
        for r in range(4):
            a(f"v_cmp_eq_u32 vcc, {r}, {t0}")
            a(f"v_cndmask_b32 {selE[r]}, {t3}, {t1}, vcc")
            a(f"v_cndmask_b32 {selO[r]}, {t3}, {t2}, vcc")
    def diag(dst, src, t):
        s = selO if (t & 1) else selE
        for r in range(4): a(f"v_perm_b32 v{dst+r}, v{src}, v{src}, {s[r]}")
    def pack24(dst, src):
        a(f"v_perm_b32 v{dst}, v{src}, v{src+3}, {sP0}")
        a(f"v_perm_b32 v{dst+1}, v{src+1}, v{src+3}, {sP1}")
        a(f"v_perm_b32 v{dst+2}, v{src+2}, v{src+3}, {sP2}")
    def unpack24(g):
        a(f"v_perm_b32 v{g+3}, v{g+1}, v{g}, {sU0}")
        a(f"v_perm_b32 v{g+3}, v{g+2}, v{g+3}, {sU1}")
    npoll = [0]
    def poll(loads, tagregs, tmp=("v4", "v5")):
        npoll[0] += 1
        L = f"L_poll{npoll[0]}"
        a.label(L)
        for l in loads: a(l)
        a(f"s_sub_u32 {sSpin}, {sSpin}, 1")
        a("s_cbranch_scc1 L_end")
        a("s_waitcnt vmcnt(0)")
        if len(tagregs) == 1:
            a(f"v_cmp_ne_u32 vcc, {sTag}, {tagregs[0]}")
        else:
            a(f"v_xor_b32 {tmp[0]}, {sTag}, {tagregs[0]}")
            for t in tagregs[1:]:
                a(f"v_xor_b32 {tmp[1]}, {sTag}, {t}")
                a(f"v_or_b32 {tmp[0]}, {tmp[0]}, {tmp[1]}")
            a(f"v_cmp_ne_u32 vcc, 0, {tmp[0]}")
        a(f"s_cbranch_vccnz {L}")
    def xg_reduce(op, v, t):
        a(f"v_mov_b32 {t}, {v}"); a(f"v_permlane16_swap_b32 {v}, {t}"); a(f"{op} {v}, {v}, {t}")
        a(f"v_mov_b32 {t}, {v}"); a(f"v_permlane32_swap_b32 {v}, {t}"); a(f"{op} {v}, {v}, {t}")
    def xg_reduce_multi(op, vs, ts):
        for sw in ("v_permlane16_swap_b32", "v_permlane32_swap_b32"):
            for v, t in zip(vs, ts): a(f"v_mov_b32 {t}, {v}")
            for v, t in zip(vs, ts): a(f"{sw} {v}, {t}")
            for v, t in zip(vs, ts): a(f"{op} {v}, {v}, {t}")
    def row_reduce(op, v, rors=(1, 2, 4, 8)):
        for r in rors: a(f"{op}_dpp {v}, {v}, {v} row_ror:{r} row_mask:0xf bank_mask:0xf")

    a(".amdgcn_target \"amdgcn-amd-amdhsa--gfx950\"")
    a(".text"); a(f".globl {K}"); a(".p2align 8"); a(f".type {K},@function"); a.label(K)
    stamp(0)
    a("s_load_dwordx2 s[8:9], s[0:1], 0")
    a("s_load_dwordx2 s[12:13], s[0:1], 104")
    a("s_cmp_ge_u32 s2, 128")
    a("s_cbranch_scc1 L_A_args")
    a("s_load_dwordx2 s[16:17], s[0:1], 16")
    a("s_load_dwordx2 s[20:21], s[0:1], 24")
    a("s_load_dwordx2 s[24:25], s[0:1], 32")
    a("s_load_dwordx2 s[28:29], s[0:1], 88")
    a("s_load_dwordx4 s[32:35], s[0:1], 56")
    srd_consts(16, 640*8192); srd_consts(20, 512*8192); srd_consts(24, 512*8192); srd_consts(28, 2560)
    a("s_branch L_common")
    a.label("L_A_args")
    a("s_cmp_ge_u32 s2, 256")
    a("s_cbranch_scc1 L_end")
    a("s_load_dwordx2 s[16:17], s[0:1], 8")
    a("s_load_dwordx2 s[20:21], s[0:1], 40")
    a("s_load_dwordx2 s[24:25], s[0:1], 72")
    a("s_load_dwordx2 s[28:29], s[0:1], 80")
    a("s_load_dwordx4 s[32:35], s[0:1], 56")
    srd_consts(16, 2*4096*1024); srd_consts(20, 4096*1280); srd_consts(24, 1728*1280); srd_consts(28, 1280)
    a.label("L_common")
    srd_consts(8, 2560); srd_consts(12, 0x10000000)
    a("v_lshrrev_b32 v4, 6, v0")
    a(f"v_and_b32 {vL}, 63, v0")
    a(f"v_readfirstlane_b32 {sWV}, v4")
    a(f"v_and_b32 {vC}, 15, v0")
    a(f"v_bfe_u32 {vG}, v0, 4, 2")
    a(f"s_and_b32 {sX}, s2, 7")
    a(f"s_bfe_u32 {sU}, s2, 0x40003")
    a(f"s_and_b32 {sH}, {sU}, 3")
    a(f"s_lshl_b32 s40, {sX}, 2")
    a(f"s_add_u32 {sH}, {sH}, s40")
    a(f"s_lshr_b32 {sJ}, {sU}, 2")
    a(f"s_mov_b32 {sSpin}, 400000")
    a("s_cmp_ge_u32 s2, 128")
    a("s_cbranch_scc1 L_A")

    XF = 40; AP = 64; UK = 224
    a(f"v_lshrrev_b32 v4, 3, {vC}")
    a("v_mul_u32_u24 v4, 1280, v4")
    a(f"v_mul_u32_u24 v5, 80, {vG}")
    a("v_add_u32 v4, v4, v5")
    a(f"s_mul_i32 s40, {sJ}, 320")
    a(f"v_mul_u32_u24 v5, {40*8192}, {vG}")
    a(f"v_lshl_add_u32 v5, {vC}, 4, v5")
    a(f"s_mul_i32 s41, {sJ}, {160*8192}")
    a(f"s_lshl_b32 s42, {sH}, 8")
    a("s_add_u32 s41, s41, s42")
    a(f"v_lshrrev_b32 v6, 2, {vC}")
    a(f"v_and_b32 v7, 3, {vC}")
    a("v_lshl_add_u32 v6, v6, 3, v7")
    a("v_lshlrev_b32 v6, 13, v6")
    a(f"v_lshl_add_u32 v6, {vG}, 4, v6")
    a(f"s_lshl_b32 s43, {sJ}, 2"); a(f"s_add_u32 s43, s43, {sWV}"); a("s_lshl_b32 s43, s43, 18")
    a("s_add_u32 s43, s43, s42")
    a(f"s_add_u32 s44, s43, {4*8192}")
    a("s_waitcnt lgkmcnt(0)")
    a(f"s_load_dword {sE}, s[12:13], {WS_EPOCH}")
    a(f"s_cmp_lg_u32 {sWV}, 0")
    a("s_cbranch_scc1 L_Q_notw0")
    for i in range(5): a(f"buffer_load_dwordx4 v[{XF+4*i}:{XF+4*i+3}], v4, {X}, s40 offen offset:{16*i}")
    for t in range(40):
        a(f"buffer_load_dwordx4 a[{4*t}:{4*t+3}], v5, {SA}, s41 offen nt")
        if t < 39: a("s_add_u32 s41, s41, 8192")
    a("s_branch L_Q_bar0")
    a.label("L_Q_notw0")
    a(f"s_cmp_lg_u32 {sWV}, 3")
    a("s_cbranch_scc1 L_Q_bar0")
    a("s_getpc_b64 s[46:47]")
    a.label("L_pc1")
    a(f"s_sub_u32 s46, s46, L_pc1-{K}")
    a("s_subb_u32 s47, s47, 0")
    a(f"s_and_b32 s45, {sU}, 7")
    a(f"s_mul_i32 s45, s45, {NPF*128}")
    a(f"v_lshl_add_u32 v8, {vL}, 7, s45")
    a(f"s_mov_b64 exec, {(1<<NPF)-1}")
    a("global_load_dword v9, v8, s[46:47]")
    a("s_mov_b64 exec, -1")
    a.label("L_Q_bar0")
    a("s_barrier")
    for tau in range(2):
        for t in range(4):
            a(f"buffer_load_dwordx4 v[{UK+16*tau+4*t}:{UK+16*tau+4*t+3}], v6, {SB}, s{43+tau} offen offset:{64*t} nt")
    make_sels("v8", "v9", "v10", "v11")
    a(f"s_mov_b32 {sP0}, 0x07060501"); a(f"s_mov_b32 {sP1}, 0x07060502"); a(f"s_mov_b32 {sP2}, 0x07060503")
    a(f"s_mov_b32 {sU0}, 0x0c04000c"); a(f"s_mov_b32 {sU1}, 0x04020100")
    a("s_waitcnt lgkmcnt(0)")
    a(f"s_add_u32 {sE}, {sE}, 1")
    a(f"s_and_b32 {sTag}, {sE}, 0xbfffbfff")
    a(f"v_lshlrev_b32 v30, 4, {vL}")
    a(f"s_lshl_b32 s45, {sH}, 12"); a(f"s_add_u32 s45, s45, {WS_H1}")
    a(f"s_cmp_gt_u32 {sWV}, 1")
    a("s_cbranch_scc1 L_Q_h1")
    a(f"s_cmp_eq_u32 {sWV}, 0")
    a("s_cbranch_scc1 L_Q_w0x")
    for i in range(5): a(f"buffer_load_dwordx4 v[{XF+4*i}:{XF+4*i+3}], v4, {X}, s40 offen offset:{16*i}")
    a("s_waitcnt vmcnt(0)")
    a.label("L_Q_w0x")
    a("s_waitcnt vmcnt(48)")
    for t in range(40): diag(AP + 4*t, XF + t//2, t)
    a(f"s_cmp_eq_u32 {sWV}, 1")
    a("s_cbranch_scc1 L_Q_h1")
    stamp(1)
    for t in range(40):
        if t % 4 == 0: a(f"s_waitcnt vmcnt({8 + 36 - t})")
        c = "0" if t == 0 else "v[8:11]"
        a(f"v_mfma_f32_16x16x32_bf16 v[8:11], v[{AP+4*t}:{AP+4*t+3}], a[{4*t}:{4*t+3}], {c}")
    a(f"v_mov_b32 v15, {sTag}")
    a(f"s_lshl_b32 s46, {sJ}, 10"); a("s_add_u32 s46, s46, s45")
    pack24(12, 8)
    a(f"buffer_store_dwordx4 v[12:15], v30, {WS}, s46 offen sc1")
    stamp(2)
    a.label("L_Q_h1")
    a(f"v_lshrrev_b32 v24, 1, {vG}"); a("v_lshlrev_b32 v24, 8, v24")
    a(f"v_lshl_add_u32 v24, {vC}, 4, v24")
    a(f"v_and_b32 v25, 1, {vG}"); a("v_lshl_add_u32 v24, v25, 3, v24")
    a(f"s_lshl_b32 s46, {sWV}, 9"); a(f"s_add_u32 s46, s46, {L_QW}")
    a("v_add_u32 v24, s46, v24")
    a(f"v_and_b32 v25, 1, {vC}"); a("v_lshlrev_b32 v25, 8, v25"); a(f"v_lshl_add_u32 v25, {vG}, 4, v25")
    a("v_add_u32 v25, s46, v25")
    a(f"v_lshlrev_b32 v26, 16, {vC}"); a(f"v_lshl_add_u32 v26, {vG}, 4, v26")
    a(f"s_lshl_b32 s47, {sH}, 11"); a(f"s_lshl_b32 s48, {sJ}, 8"); a("s_add_u32 s47, s47, s48")
    a(f"s_lshl_b32 s48, {sWV}, 6"); a("s_add_u32 s47, s47, s48"); a(f"s_add_u32 s47, s47, {WS_H2}")
    a(f"v_cmp_gt_u32 s[52:53], 2, {vC}")
    a(f"s_mov_b32 s49, {f32(SCALE)}")
    poll([f"buffer_load_dwordx4 v[{8+4*i}:{11+4*i}], v30, {WS}, s45 offen offset:{1024*i} sc1" for i in range(4)],
         ["v11", "v15", "v19", "v23"])
    stamp(3)
    for i in range(4): unpack24(8 + 4*i)
    a("v_pk_add_f32 v[8:9], v[8:9], v[12:13]"); a("v_pk_add_f32 v[10:11], v[10:11], v[14:15]")
    a("v_pk_add_f32 v[16:17], v[16:17], v[20:21]"); a("v_pk_add_f32 v[18:19], v[18:19], v[22:23]")
    a("v_pk_add_f32 v[8:9], v[8:9], v[16:17]"); a("v_pk_add_f32 v[10:11], v[10:11], v[18:19]")
    a("v_cvt_pk_bf16_f32 v8, v8, v9"); a("v_cvt_pk_bf16_f32 v9, v10, v11")
    a("ds_write_b64 v24, v[8:9]")
    a("s_waitcnt lgkmcnt(0)")
    for t in range(4): a(f"ds_read_b128 v[{8+4*t}:{11+4*t}], v25 offset:{64*t}")
    for t in range(4):
        a(f"s_waitcnt lgkmcnt({3-t})")
        for tau in range(2):
            c = "0" if t == 0 else f"v[{40+4*tau}:{43+4*tau}]"
            a(f"v_mfma_f32_16x16x32_bf16 v[{40+4*tau}:{43+4*tau}], v[{UK+16*tau+4*t}:{UK+16*tau+4*t+3}], v[{8+4*t}:{11+4*t}], {c}")
    a(f"v_mov_b32 v50, {sTag}"); a(f"v_mov_b32 v51, {sTag}"); a(f"v_mov_b32 v54, {sTag}"); a(f"v_mov_b32 v55, {sTag}")
    for r in range(8): a(f"v_mul_f32 v{40+r}, s49, v{40+r}")
    a("v_cvt_pk_bf16_f32 v48, v40, v41"); a("v_cvt_pk_bf16_f32 v49, v42, v43")
    a("v_cvt_pk_bf16_f32 v52, v44, v45"); a("v_cvt_pk_bf16_f32 v53, v46, v47")
    a("s_mov_b64 exec, s[52:53]")
    a(f"buffer_store_dwordx4 v[48:51], v26, {WS}, s47 offen sc1")
    a(f"buffer_store_dwordx4 v[52:55], v26, {WS}, s47 offen offset:1024 sc1")
    a("s_mov_b64 exec, -1")
    stamp(4)
    a(f"s_cmp_eq_u32 {sWV}, 1")
    a("s_cbranch_scc1 L_Q_f1")
    a(f"s_max_u32 s46, {sWV}, 1"); a("s_sub_u32 s46, s46, 1")
    a(f"v_lshlrev_b32 v8, 13, {vG}"); a(f"v_lshl_add_u32 v8, {vC}, 4, v8")
    a(f"s_lshl_b32 s47, {sJ}, 20"); a("s_add_u32 s47, s47, s42")
    a("s_lshl_b32 s48, s46, 15"); a("s_add_u32 s47, s47, s48")
    a(f"s_mul_i32 s48, s46, {UV_BS}")
    a.label("L_Q_uvloop")
    a("s_mov_b32 m0, s48")
    a(f"s_add_u32 s48, s48, {3*UV_BS}")
    a(f"buffer_load_dwordx4 v8, {SC}, s47 offen nt lds")
    a(f"s_add_u32 s47, s47, {3*4*8192}")
    a(f"s_cmp_lt_u32 s48, {32*UV_BS}")
    a("s_cbranch_scc1 L_Q_uvloop")
    a("s_branch L_Q_p2done")
    a.label("L_Q_f1")
    a(f"s_cmp_ge_u32 {sH}, 27")
    a("s_cbranch_scc1 L_Q_p2done")
    a(f"v_cmp_gt_u32 vcc, 8, {vC}")
    a("v_mov_b32 v8, s34"); a("v_mov_b32 v9, s35"); a("v_mov_b32 v10, s32"); a("v_mov_b32 v11, s33")
    a("v_cndmask_b32 v8, v8, v10, vcc"); a("v_cndmask_b32 v9, v9, v11, vcc")
    a(f"v_mul_u32_u24 v10, {40*3456}, {vG}")
    a(f"v_and_b32 v11, 7, {vC}"); a("v_lshl_add_u32 v10, v11, 4, v10")
    a(f"s_mul_i32 s46, {sJ}, {160*3456}"); a(f"s_lshl_b32 s47, {sH}, 7"); a("s_add_u32 s46, s46, s47")
    a("s_add_u32 s46, s46, 3456")
    a("v_add_u32 v10, s46, v10"); a("v_mov_b32 v11, 0")
    a("v_lshl_add_u64 v[8:9], v[8:9], 0, v[10:11]")
    a(f"s_mov_b32 s46, {2*3456}"); a("s_mov_b32 s47, 0")
    for t in range(40):
        a(f"global_load_dwordx4 a[{4*t}:{4*t+3}], v[8:9], off offset:{-3456 if t % 2 == 0 else 0} nt")
        if t % 2 == 1 and t < 39: a("v_lshl_add_u64 v[8:9], v[8:9], 0, s[46:47]")
    a(f"v_bfe_u32 v12, {vC}, 1, 2"); a("v_lshlrev_b32 v12, 10, v12")
    a(f"v_lshrrev_b32 v13, 3, {vC}"); a("v_lshl_add_u32 v12, v13, 7, v12")
    a(f"v_and_b32 v13, 1, {vC}"); a("v_lshl_add_u32 v12, v13, 6, v12")
    a(f"v_lshl_add_u32 v12, {vG}, 4, v12")
    a(f"s_lshl_b32 s46, {sH}, 12"); a(f"s_lshl_b32 s47, {sJ}, 8"); a("s_add_u32 s46, s46, s47"); a(f"s_add_u32 s46, s46, {WS_HF}")
    a(f"v_mov_b32 v23, {sTag}")
    for t in range(40):
        if t % 4 == 0: a(f"s_waitcnt vmcnt({36 - t})")
        c = "0" if t == 0 else "v[16:19]"
        a(f"v_mfma_f32_16x16x32_bf16 v[16:19], v[{AP+4*t}:{AP+4*t+3}], a[{4*t}:{4*t+3}], {c}")
    pack24(20, 16)
    a(f"buffer_store_dwordx4 v[20:23], v12, {WS}, s46 offen sc1")
    a.label("L_Q_p2done")
    a(f"v_mul_u32_u24 v8, {4*UV_BS}, {vG}")
    a(f"v_lshrrev_b32 v9, 2, {vC}"); a("v_lshl_add_u32 v8, v9, 8, v8")
    a(f"v_and_b32 v9, 3, {vC}"); a("v_lshl_add_u32 v8, v9, 3, v8")
    a(f"s_lshl_b32 s46, {sWV}, 6"); a("v_add_u32 v8, s46, v8")
    a(f"v_mul_u32_u24 v24, {8*768}, {vG}"); a(f"v_lshl_add_u32 v24, {vC}, 4, v24")
    a(f"s_lshl_b32 s46, {sH}, 2"); a(f"s_add_u32 s46, s46, {sJ}"); a(f"s_mul_i32 s46, s46, {32*768}")
    a(f"s_lshl_b32 s47, {sWV}, 8"); a("s_add_u32 s46, s46, s47"); a(f"s_add_u32 s46, s46, {WS_H3}")
    a(f"s_add_u32 s47, s46, {4*768}")
    a(f"s_lshl_b32 s48, {sH}, 10"); a(f"s_add_u32 s48, s48, {WS_ST}")
    a(f"s_lshl_b32 s49, {sWV}, 7"); a(f"s_add_u32 s49, s49, {L_FW}")
    a(f"v_lshl_add_u32 v25, {vL}, 1, s49")
    a(f"v_lshrrev_b32 v26, 3, {vC}"); a("v_lshlrev_b32 v26, 6, v26"); a(f"v_lshl_add_u32 v26, {vG}, 4, v26"); a("v_add_u32 v26, s49, v26")
    a(f"s_lshl_b32 s50, {sWV}, 4"); a(f"v_add_u32 v9, s50, {vC}")
    a("v_cmp_le_u32 vcc, 24, v9")
    a("v_cndmask_b32 v10, 0, 1, vcc")
    a("v_mul_u32_u24 v11, 24, v10"); a("v_sub_u32 v9, v9, v11")
    a("v_mul_u32_u24 v27, 320, v10")
    a("v_and_b32 v11, 3, v9"); a("v_mul_u32_u24 v11, 80, v11"); a("v_add_u32 v27, v27, v11")
    a("v_lshrrev_b32 v11, 2, v9"); a("v_mul_u32_u24 v11, 12, v11"); a("v_add_u32 v27, v27, v11")
    a(f"v_and_b32 v11, 1, {vG}"); a("v_lshl_add_u32 v27, v11, 3, v27"); a(f"v_add_u32 v27, {L_LAT}, v27")
    a(f"v_lshrrev_b32 v9, 1, {vG}")
    a("v_cmp_eq_u32 s[54:55], v9, v10")
    a("v_cmp_eq_u32 vcc, 0, v11")
    a("s_and_b64 s[56:57], s[54:55], vcc")
    a(f"v_and_b32 v28, 1, {vC}"); a("v_mul_u32_u24 v28, 320, v28"); a(f"v_lshl_add_u32 v28, {vG}, 4, v28"); a(f"v_add_u32 v28, {L_LAT}, v28")
    a(f"v_lshlrev_b32 v29, 6, {vC}"); a(f"v_lshl_add_u32 v29, {vG}, 4, v29")
    a(f"s_lshl_b32 s50, {sH}, 2"); a(f"s_add_u32 s50, s50, {sWV}"); a("s_lshl_b32 s50, s50, 2"); a(f"s_add_u32 s50, s50, {sJ}")
    a("s_lshl_b32 s50, s50, 8"); a(f"s_add_u32 s50, s50, {WS_H4}")
    a("s_waitcnt vmcnt(0)")
    a("s_barrier")
    stamp(5)
    for tau in range(2):
        for t in range(4):
            for hh in range(2):
                off = (16*(t >> 1) + (t & 1) + 2*hh) * UV_BS + tau*32
                r = UK + 16*tau + 4*t + 2*hh
                a(f"ds_read_b64_tr_b16 v[{r}:{r+1}], v8 offset:{off}")
    a(f"s_cmp_eq_u32 {sWV}, 3")
    a("s_cbranch_scc1 L_Q_b2")
    poll([f"buffer_load_dwordx4 v[12:15], v30, {WS}, s48 offen sc1"], ["v15"])
    stamp(6)
    PL = 64; AF = 96
    ploads = [f"buffer_load_dwordx4 v[{PL+4*t}:{PL+4*t+3}], v24, {WS}, s{46 + t//4} offen offset:{(t%4)*768} sc1" for t in range(8)]
    for l in ploads: a(l)
    a("v_mov_b32 v16, v12")
    row_reduce("v_max_f32", "v16")
    a("v_mov_b32 v17, v16"); a("v_permlane16_swap_b32 v16, v17"); a("v_max_f32 v16, v16, v17")
    a("v_sub_f32 v16, v12, v16"); a("v_exp_f32 v16, v16")
    a("v_mul_f32 v18, v16, v13")
    row_reduce("v_add_f32", "v18")
    a("v_mov_b32 v17, v18"); a("v_permlane16_swap_b32 v18, v17"); a("v_add_f32 v18, v18, v17")
    a("v_rcp_f32 v18, v18")
    a("v_mul_f32 v16, v16, v18")
    a("v_cvt_pk_bf16_f32 v16, v16, v16")
    a("ds_write_b16 v25, v16")
    a("s_waitcnt lgkmcnt(0)")
    a("ds_read_b128 v[16:19], v26")
    a("s_waitcnt lgkmcnt(0)")
    for t in range(8): diag(AF + 4*t, 16 + t//2, t)
    a("s_branch L_Q_h3chk")
    a.label("L_Q_h3re")
    for l in ploads: a(l)
    a(f"s_sub_u32 {sSpin}, {sSpin}, 1")
    a("s_cbranch_scc1 L_end")
    a.label("L_Q_h3chk")
    a("s_waitcnt vmcnt(0)")
    a(f"v_xor_b32 v4, {sTag}, v{PL+3}")
    for t in range(1, 8):
        a(f"v_xor_b32 v5, {sTag}, v{PL+4*t+3}"); a("v_or_b32 v4, v4, v5")
    a("v_cmp_ne_u32 vcc, 0, v4")
    a("s_cbranch_vccnz L_Q_h3re")
    stamp(7)
    for t in range(8):
        c = "0" if t == 0 else "v[16:19]"
        a(f"v_mfma_f32_16x16x32_bf16 v[16:19], v[{AF+4*t}:{AF+4*t+3}], v[{PL+4*t}:{PL+4*t+3}], {c}")
    a("v_cvt_pk_bf16_f32 v20, v16, v17"); a("v_cvt_pk_bf16_f32 v21, v18, v19")
    a("s_mov_b64 exec, s[54:55]")
    a("ds_write_b32 v27, v20")
    a("s_mov_b64 exec, s[56:57]")
    a("ds_write_b32 v27, v21 offset:4")
    a("s_mov_b64 exec, -1")
    a.label("L_Q_b2")
    a("s_waitcnt lgkmcnt(0)")
    a("s_barrier")
    for t in range(4): a(f"ds_read_b128 v[{8+4*t}:{11+4*t}], v28 offset:{80*t}")
    a(f"v_mov_b32 v51, {sTag}"); a(f"v_mov_b32 v55, {sTag}")
    for t in range(4):
        a(f"s_waitcnt lgkmcnt({3-t})")
        for tau in range(2):
            c = "0" if t == 0 else f"v[{40+4*tau}:{43+4*tau}]"
            a(f"v_mfma_f32_16x16x32_bf16 v[{40+4*tau}:{43+4*tau}], v[{UK+16*tau+4*t}:{UK+16*tau+4*t+3}], v[{8+4*t}:{11+4*t}], {c}")
    pack24(48, 40); pack24(52, 44)
    a("s_mov_b64 exec, s[52:53]")
    a(f"buffer_store_dwordx4 v[48:51], v29, {WS}, s50 offen sc1")
    a(f"buffer_store_dwordx4 v[52:55], v29, {WS}, s50 offen offset:128 sc1")
    a("s_mov_b64 exec, -1")
    stamp(8)
    a("s_cmp_ge_u32 s2, 40")
    a("s_cbranch_scc1 L_fin")
    a("v_lshlrev_b32 v30, 4, v0")
    a(f"s_lshl_b32 s46, s2, 14"); a(f"s_add_u32 s46, s46, {WS_H5}")
    a(f"s_add_u32 s47, s46, 4096"); a(f"s_add_u32 s48, s46, 8192"); a(f"s_add_u32 s49, s46, 12288")
    a(f"v_and_b32 v24, 7, {vL}")
    a(f"s_lshl_b32 s50, {sWV}, 7"); a(f"s_add_u32 s50, s50, {L_FIN}")
    a("v_lshl_add_u32 v25, v24, 4, s50")
    a(f"v_lshlrev_b32 v26, 4, v24"); a(f"v_add_u32 v26, {L_FIN}, v26")
    a("s_lshr_b32 s51, s2, 3")
    a("s_bfe_u32 s54, s2, 0x20001")
    a("s_and_b32 s55, s2, 1")
    a("s_lshr_b32 s56, s54, 1"); a("s_mul_i32 s56, s56, 1280")
    a("s_lshl_b32 s51, s51, 8"); a("s_add_u32 s56, s56, s51")
    a("s_lshl_b32 s55, s55, 7"); a("s_add_u32 s56, s56, s55")
    a("s_and_b32 s54, s54, 1"); a("s_lshl_b32 s54, s54, 3"); a("s_add_u32 s56, s56, s54")
    a("v_lshlrev_b32 v27, 4, v24")
    poll([f"buffer_load_dwordx4 v[{8+4*i}:{11+4*i}], v30, {WS}, s{46+i} offen sc1" for i in range(4)],
         ["v11", "v15", "v19", "v23"])
    stamp(9)
    for i in range(4): unpack24(8 + 4*i)
    a("v_pk_add_f32 v[8:9], v[8:9], v[12:13]"); a("v_pk_add_f32 v[10:11], v[10:11], v[14:15]")
    a("v_pk_add_f32 v[16:17], v[16:17], v[20:21]"); a("v_pk_add_f32 v[18:19], v[18:19], v[22:23]")
    a("v_pk_add_f32 v[8:9], v[8:9], v[16:17]"); a("v_pk_add_f32 v[10:11], v[10:11], v[18:19]")
    for r in range(4): a(f"v_add_f32_dpp v{8+r}, v{8+r}, v{8+r} row_ror:8 row_mask:0xf bank_mask:0xf")
    xg_reduce_multi("v_add_f32", ["v8", "v9", "v10", "v11"], ["v12", "v13", "v14", "v15"])
    a("s_mov_b64 exec, 0xff")
    a("ds_write_b128 v25, v[8:11]")
    a("s_waitcnt lgkmcnt(0)")
    a("s_barrier")
    a(f"s_cmp_lg_u32 {sWV}, 0")
    a("s_cbranch_scc1 L_fin")
    for i in range(4): a(f"ds_read_b128 v[{8+4*i}:{11+4*i}], v26 offset:{128*i}")
    a("s_waitcnt lgkmcnt(0)")
    a("v_pk_add_f32 v[8:9], v[8:9], v[12:13]"); a("v_pk_add_f32 v[10:11], v[10:11], v[14:15]")
    a("v_pk_add_f32 v[16:17], v[16:17], v[20:21]"); a("v_pk_add_f32 v[18:19], v[18:19], v[22:23]")
    a("v_pk_add_f32 v[8:9], v[8:9], v[16:17]"); a("v_pk_add_f32 v[10:11], v[10:11], v[18:19]")
    a("v_cvt_pk_bf16_f32 v8, v8, v9"); a("v_cvt_pk_bf16_f32 v9, v10, v11")
    a(f"buffer_store_dwordx2 v[8:9], v27, {SD}, s56 offen")
    a("s_cmp_lg_u32 s2, 0")
    a("s_cbranch_scc1 L_fin")
    a("s_mov_b64 exec, 1")
    a(f"v_mov_b32 v10, {sE}"); a("v_mov_b32 v11, 0")
    a(f"buffer_store_dword v10, v11, {WS}, 0 offen offset:{WS_EPOCH} sc1")
    a("s_branch L_fin")

    a.label("L_A")
    sB_, sS_, sHG = "s40", "s41", "s42"
    a(f"s_lshr_b32 {sB_}, {sX}, 2")
    a(f"s_and_b32 {sS_}, {sX}, 3"); a(f"s_lshl_b32 {sS_}, {sS_}, 3"); a(f"s_and_b32 s43, {sU}, 7"); a(f"s_add_u32 {sS_}, {sS_}, s43")
    a(f"s_lshr_b32 {sHG}, {sU}, 3")
    a(f"v_lshlrev_b32 v30, 4, {vL}")
    a(f"s_lshl_b32 s44, {sB_}, 5"); a(f"s_add_u32 s44, s44, {sS_}"); a("s_lshl_b32 s44, s44, 2"); a(f"s_add_u32 s44, s44, {sWV}"); a("s_lshl_b32 s44, s44, 15")
    a(f"s_mul_i32 s45, {sWV}, {32*CKV_STRIDE}")
    a(f"s_add_u32 s46, s45, {32*CKV_STRIDE}")
    a(f"v_lshlrev_b32 v4, 2, {vL}")
    a("s_waitcnt lgkmcnt(0)")
    a(f"s_load_dword {sE}, s[12:13], {WS_EPOCH}")
    a(f"s_cmp_lg_u32 {sWV}, 3")
    a("s_cbranch_scc1 L_A_dma")
    a(f"buffer_load_dwordx4 v[40:43], v30, {X}, 0 offen"); a(f"buffer_load_dword v44, v4, {X}, 0 offen offset:1024")
    a(f"buffer_load_dwordx4 v[48:51], v30, {X}, 0 offen offset:1280"); a(f"buffer_load_dword v52, v4, {X}, 0 offen offset:2304")
    a(f"buffer_load_dwordx4 v[56:59], v30, {SD}, 0 offen"); a(f"buffer_load_dword v60, v4, {SD}, 0 offen offset:1024")
    a.label("L_A_dma")
    a("s_mov_b32 m0, s45")
    a(f"s_add_u32 s45, s45, {CKV_STRIDE}")
    a(f"buffer_load_dwordx4 v30, {SA}, s44 offen nt lds")
    a("s_add_u32 s44, s44, 1024")
    a("s_cmp_lt_u32 s45, s46")
    a("s_cbranch_scc1 L_A_dma")
    make_sels("v8", "v9", "v10", "v11")
    a(f"s_mov_b32 {sP0}, 0x07060501"); a(f"s_mov_b32 {sP1}, 0x07060502"); a(f"s_mov_b32 {sP2}, 0x07060503")
    a(f"s_mov_b32 {sU0}, 0x0c04000c"); a(f"s_mov_b32 {sU1}, 0x04020100")
    a("s_waitcnt lgkmcnt(0)")
    a(f"s_add_u32 {sE}, {sE}, 1")
    a(f"s_and_b32 {sTag}, {sE}, 0xbfffbfff")
    a(f"s_cmp_lg_u32 {sWV}, 3")
    a("s_cbranch_scc1 L_A_nogate")
    a("s_waitcnt vmcnt(32)")
    a("v_mov_b32 v8, 0"); a("v_mov_b32 v9, 0")
    for i in range(5):
        a(f"v_dot2_f32_bf16 v8, v{40+i}, v{56+i}, v8")
        a(f"v_dot2_f32_bf16 v9, v{48+i}, v{56+i}, v9")
    a("s_nop 2")
    for r in (1, 2, 4, 8):
        a(f"v_add_f32_dpp v8, v8, v8 row_ror:{r} row_mask:0xf bank_mask:0xf")
        a(f"v_add_f32_dpp v9, v9, v9 row_ror:{r} row_mask:0xf bank_mask:0xf")
    xg_reduce_multi("v_add_f32", ["v8", "v9"], ["v10", "v11"])
    a(f"s_mov_b32 s47, {f32(-math.log2(math.e))}")
    a("v_mul_f32 v8, s47, v8"); a("v_mul_f32 v9, s47, v9")
    a("v_exp_f32 v8, v8"); a("v_exp_f32 v9, v9")
    a("v_add_f32 v8, 1.0, v8"); a("v_add_f32 v9, 1.0, v9")
    a("v_rcp_f32 v8, v8"); a("v_rcp_f32 v9, v9")
    a("v_sub_f32 v10, 1.0, v8"); a("v_sub_f32 v11, 1.0, v9")
    a(f"v_mov_b32 v12, {L_G}")
    a("ds_write_b128 v12, v[8:11]")
    a.label("L_A_nogate")
    a(f"v_mul_u32_u24 v8, {CKV_STRIDE}, {vC}"); a(f"v_lshl_add_u32 v8, {vG}, 4, v8")
    a(f"s_mul_i32 s45, {sWV}, {32*CKV_STRIDE}"); a("v_add_u32 v8, s45, v8")
    a(f"s_lshl_b32 s44, {sB_}, 5"); a(f"s_lshl_b32 s45, {sHG}, 4"); a("s_add_u32 s44, s44, s45"); a(f"s_lshl_b32 s45, {sWV}, 2"); a("s_add_u32 s44, s44, s45")
    a("s_lshl_b32 s44, s44, 11"); a(f"s_add_u32 s44, s44, {WS_H2}"); a("s_add_u32 s45, s44, 4096")
    for hh in range(4):
        a(f"s_lshl_b32 s46, {sWV}, 2"); a(f"s_add_u32 s46, s46, {hh}")
        a(f"v_xor_b32 v{12+hh}, s46, {vC}")
        a(f"v_lshlrev_b32 v{12+hh}, 4, v{12+hh}")
        a(f"v_lshl_add_u32 v{12+hh}, {vL}, 8, v{12+hh}")
        a(f"v_add_u32 v{12+hh}, {L_QA}, v{12+hh}")
    for k in range(4):
        a(f"v_or_b32 v{16+k}, {4*k}, {vG}")
        a(f"v_xor_b32 v{16+k}, v{16+k}, {vC}")
        a(f"v_lshlrev_b32 v{16+k}, 4, v{16+k}")
        a(f"v_lshl_add_u32 v{16+k}, {vG}, 8, v{16+k}")
        a(f"v_add_u32 v{16+k}, {L_QA}, v{16+k}")
    a(f"v_lshrrev_b32 v9, 2, {vC}"); a(f"v_lshl_add_u32 v9, {vG}, 2, v9"); a(f"v_mul_u32_u24 v20, {CKV_STRIDE}, v9")
    a(f"v_bfe_u32 v9, {vC}, 1, 1"); a("v_lshl_add_u32 v20, v9, 7, v20")
    a(f"v_and_b32 v9, 1, {vC}"); a("v_lshl_add_u32 v20, v9, 3, v20")
    a(f"s_lshl_b32 s46, {sWV}, 8"); a("v_add_u32 v20, s46, v20")
    a(f"v_add_u32 v21, {64*CKV_STRIDE}, v20")
    a(f"v_lshlrev_b32 v22, 4, {vC}"); a(f"v_add_u32 v22, {L_MAX}, v22")
    a(f"s_lshl_b32 s46, {sWV}, 2"); a("v_add_u32 v23, s46, v22")
    a(f"v_add_u32 v24, {L_P}, v30"); a(f"s_lshl_b32 s46, {sWV}, 10"); a("v_add_u32 v25, s46, v24")
    a(f"v_mul_u32_u24 v26, {4*32*768}, {vC}"); a(f"v_lshl_add_u32 v26, {vG}, 4, v26")
    a(f"s_lshl_b32 s46, {sHG}, 6"); a(f"s_add_u32 s46, s46, {sWV}"); a("s_lshl_b32 s46, s46, 5"); a(f"s_add_u32 s46, s46, {sS_}")
    a("s_mul_i32 s46, s46, 768"); a(f"s_mul_i32 s47, {sB_}, 384"); a("s_add_u32 s46, s46, s47"); a(f"s_add_u32 s46, s46, {WS_H3}")
    a(f"v_lshlrev_b32 v27, 10, {vC}")
    a(f"s_lshl_b32 s47, {sB_}, 5"); a(f"s_add_u32 s47, s47, {sS_}"); a("s_lshl_b32 s47, s47, 4"); a(f"s_lshl_b32 s48, {sHG}, 14"); a("s_add_u32 s47, s47, s48"); a(f"s_add_u32 s47, s47, {WS_ST}")
    OG = 192
    for i in range(6): a(f"v_mov_b32 v{OG+4*i+3}, {sTag}")
    a(f"v_mov_b32 v{OG+21}, 0"); a(f"v_mov_b32 v{OG+22}, 0")
    a("s_waitcnt vmcnt(16)")
    for t in range(16): a(f"ds_read_b128 a[{4*t}:{4*t+3}], v8 offset:{64*t}")
    a("s_waitcnt vmcnt(0)")
    stamp(1)
    for t in range(16): a(f"ds_read_b128 a[{64+4*t}:{64+4*t+3}], v8 offset:{16*CKV_STRIDE + 64*t}")
    HG = 40
    poll([f"buffer_load_dwordx4 v[{HG+4*i}:{HG+4*i+3}], v30, {WS}, s{44 + i//4} offen offset:{(i%4)*1024} sc1" for i in range(8)],
         [f"v{HG+4*i+3}" for i in range(8)])
    stamp(2)
    for hh in range(4):
        a(f"ds_write2_b64 v{12+hh}, v[{HG+8*hh}:{HG+8*hh+1}], v[{HG+8*hh+4}:{HG+8*hh+5}] offset0:0 offset1:1")
    a("s_waitcnt lgkmcnt(0)")
    a("s_barrier")
    QF = 72; SACC = 136; PF = 144; OACC = 160
    for t in range(8): a(f"ds_read_b128 v[{QF+4*t}:{QF+4*t+3}], v{16 + (t & 3)} offset:{1024*t}")
    for t in range(16):
        if t + 8 < 16:
            a(f"ds_read_b128 v[{QF+4*(t+8)}:{QF+4*(t+8)+3}], v{16 + (t & 3)} offset:{1024*(t+8)}")
            a("s_waitcnt lgkmcnt(8)")
        else:
            a(f"s_waitcnt lgkmcnt({15-t})")
        for tau in range(2):
            c = "0" if t == 0 else f"v[{SACC+4*tau}:{SACC+4*tau+3}]"
            a(f"v_mfma_f32_16x16x32_bf16 v[{SACC+4*tau}:{SACC+4*tau+3}], a[{64*tau+4*t}:{64*tau+4*t+3}], v[{QF+4*t}:{QF+4*t+3}], {c}")
    def tr_reads(ns):
        for n in ns:
            for w in range(4):
                for hh in range(2):
                    base = "v20" if w < 2 else "v21"
                    off = (32*(w & 1) + 16*hh) * CKV_STRIDE + 16*n
                    r = 128 + 16*n + 4*w + 2*hh
                    a(f"ds_read_b64_tr_b16 a[{r}:{r+1}], {base} offset:{off}")
    stamp(3)
    S = SACC
    a(f"v_max3_f32 v4, v{S}, v{S+1}, v{S+2}"); a(f"v_max3_f32 v5, v{S+3}, v{S+4}, v{S+5}")
    a(f"v_max3_f32 v4, v4, v{S+6}, v{S+7}"); a("v_max_f32 v4, v4, v5")
    xg_reduce("v_max_f32", "v4", "v5")
    a("ds_write_b32 v23, v4")
    a("s_waitcnt lgkmcnt(0)")
    a("s_barrier")
    a("ds_read_b128 v[4:7], v22")
    tr_reads([0, 1])
    a("s_waitcnt lgkmcnt(15)")
    a("v_max3_f32 v4, v4, v5, v6"); a("v_max_f32 v28, v4, v7")
    for r in range(8): a(f"v_sub_f32 v{S+r}, v{S+r}, v28")
    for r in range(8): a(f"v_exp_f32 v{S+r}, v{S+r}")
    for r in range(4): a(f"v_cvt_pk_bf16_f32 v{4+r}, v{S+2*r}, v{S+2*r+1}")
    a("ds_write_b128 v25, v[4:7]")
    a(f"v_add_f32 v9, v{S}, v{S+1}")
    for r in range(2, 8): a(f"v_add_f32 v9, v9, v{S+r}")
    xg_reduce("v_add_f32", "v9", "v10")
    a(f"ds_write_b32 v23, v9 offset:{L_SUM - L_MAX}")
    a("s_waitcnt lgkmcnt(0)")
    a("s_barrier")
    stamp(4)
    for w in range(4): a(f"ds_read_b128 v[{PF+4*w}:{PF+4*w+3}], v24 offset:{1024*w}")
    a(f"ds_read_b128 v[4:7], v22 offset:{L_SUM - L_MAX}")
    for n in range(8):
        if n + 2 < 8:
            tr_reads([n + 2])
            if n == 0: a("s_waitcnt lgkmcnt(8)")
            elif n >= 2: a("s_waitcnt lgkmcnt(15)")
        elif n == 6: a("s_waitcnt lgkmcnt(8)")
        else: a("s_waitcnt lgkmcnt(0)")
        for w in range(4):
            c = "0" if w == 0 else f"v[{OACC+4*n}:{OACC+4*n+3}]"
            a(f"v_mfma_f32_16x16x32_bf16 v[{OACC+4*n}:{OACC+4*n+3}], a[{128+16*n+4*w}:{128+16*n+4*w+3}], v[{PF+4*w}:{PF+4*w+3}], {c}")
        def pk(nn):
            for half in range(2):
                p = 2*nn + half
                a(f"v_cvt_pk_bf16_f32 v{OG + 4*(p//3) + p%3}, v{OACC+4*nn+2*half}, v{OACC+4*nn+2*half+1}")
                if p % 3 == 2 or p == 15:
                    i = p // 3
                    a(f"buffer_store_dwordx4 v[{OG+4*i}:{OG+4*i+3}], v26, {WS}, s46 offen offset:{64*i} sc1")
        if n >= 1: pk(n - 1)
    pk(7)
    a("v_add_f32 v4, v4, v5"); a("v_add_f32 v6, v6, v7"); a("v_add_f32 v9, v4, v6")
    a("v_mov_b32 v8, v28"); a(f"v_mov_b32 v10, {sTag}"); a(f"v_mov_b32 v11, {sTag}")
    a(f"s_cmp_lg_u32 {sWV}, 3")
    a("s_cbranch_scc1 L_A_nost")
    a("s_mov_b64 exec, 0xffff")
    a(f"buffer_store_dwordx4 v[8:11], v27, {WS}, s47 offen sc1")
    a("s_mov_b64 exec, -1")
    a.label("L_A_nost")
    stamp(5)
    a(f"v_mul_u32_u24 v12, {8*1280}, {vG}"); a(f"v_lshl_add_u32 v12, {vC}, 4, v12")
    a(f"v_mul_u32_u24 v13, {4*1280}, {vG}"); a(f"v_lshl_add_u32 v13, {vC}, 4, v13")
    a(f"s_lshl_b32 s44, {sH}, 2"); a(f"s_add_u32 s44, s44, {sJ}")
    a(f"s_mul_i32 s45, s44, {32*1280}"); a(f"s_lshl_b32 s46, {sWV}, 8"); a("s_add_u32 s45, s45, s46")
    a(f"s_mul_i32 s48, s44, {16*1280}"); a("s_add_u32 s48, s48, s46")
    a(f"s_add_u32 s49, s48, {2*1280}")
    WD, WO, WD2, WO2 = 0, 16, 48, 64
    def wd_loads(dst, extra):
        for t in range(4):
            a(f"buffer_load_dwordx4 a[{dst+4*t}:{dst+4*t+3}], v13, {SC}, s{48 + t//2} offen offset:{(t%2)*1280 + extra} nt")
    def wo_loads(dst, extra):
        for t in range(8):
            if t % 2 == 0: a(f"s_add_u32 s50, s45, {t*1280}")
            a(f"buffer_load_dwordx4 a[{dst+4*t}:{dst+4*t+3}], v12, {SB}, s50 offen offset:{(t%2)*1280 + extra} nt")
    wd_loads(WD, 0)
    wo_loads(WO, 0)
    a(f"s_cmp_lg_u32 {sWV}, 0")
    a("s_cbranch_scc1 L_A_w0l")
    wd_loads(WD2, 1024)
    wo_loads(WO2, 1024)
    a.label("L_A_w0l")
    a(f"v_mov_b32 v14, {L_G}")
    a("ds_read_b128 v[16:19], v14")
    a(f"s_lshl_b32 s46, {sWV}, 8"); a(f"s_add_u32 s46, s46, {L_ACT}")
    a(f"v_bfe_u32 v4, {vL}, 1, 1")
    a(f"v_bfe_u32 v5, {vL}, 2, 1"); a(f"v_and_b32 v6, 1, {vL}")
    a("v_lshlrev_b32 v20, 5, v4"); a("v_lshl_add_u32 v20, v5, 4, v20"); a("v_lshl_add_u32 v20, v6, 3, v20"); a("v_add_u32 v20, s46, v20")
    a("v_cmp_ne_u32 s[52:53], 0, v4")
    a(f"v_lshrrev_b32 v7, 3, {vC}")
    a("v_lshlrev_b32 v21, 5, v7"); a(f"v_lshl_add_u32 v21, {vG}, 3, v21"); a("v_add_u32 v21, s46, v21")
    a(f"v_bfe_u32 v6, {vL}, 3, 1"); a(f"v_and_b32 v4, 3, {vL}")
    a("v_lshlrev_b32 v22, 6, v5"); a("v_lshl_add_u32 v22, v6, 5, v22"); a("v_lshl_add_u32 v22, v4, 3, v22"); a("v_add_u32 v22, s46, v22")
    a("v_cmp_ne_u32 s[54:55], 0, v5")
    a("v_lshlrev_b32 v23, 6, v7"); a(f"v_lshl_add_u32 v23, {vG}, 4, v23"); a("v_add_u32 v23, s46, v23")
    a(f"s_lshl_b32 s47, s44, 10"); a(f"s_add_u32 s48, s47, {WS_HF}"); a(f"s_add_u32 s49, s47, {WS_H4}")
    a(f"v_lshrrev_b32 v24, 3, {vL}"); a("v_lshlrev_b32 v24, 14, v24"); a(f"v_and_b32 v4, 7, {vL}"); a("v_lshl_add_u32 v24, v4, 4, v24")
    a("s_sub_u32 s50, s2, 128"); a("s_lshl_b32 s50, s50, 7"); a(f"s_add_u32 s50, s50, {WS_H5}")
    a(f"s_add_u32 s51, s50, {4*8*16384}")
    a(f"s_lshl_b32 s47, {sWV}, 17"); a("s_add_u32 s50, s50, s47")
    a("s_waitcnt lgkmcnt(0)")
    a("v_cndmask_b32 v25, v18, v19, s[52:53]")
    a("v_cndmask_b32 v26, v16, v17, s[54:55]")
    AP5 = 72; ACC = 136; ACC2 = 140
    for r in range(8): a(f"v_mov_b32 v{ACC+r}, 0")
    a(f"v_mov_b32 v147, {sTag}"); a(f"v_mov_b32 v151, {sTag}")
    a(f"s_cmp_ge_u32 {sH}, 27")
    a("s_cbranch_scc1 L_A_noffn")
    poll([f"buffer_load_dwordx4 v[8:11], v30, {WS}, s48 offen sc1"], ["v11"])
    stamp(6)
    unpack24(8)
    xg_reduce_multi("v_add_f32", ["v8", "v9", "v10", "v11"], ["v12", "v13", "v14", "v15"])
    for r in range(4): a(f"v_mov_b32_dpp v{12+r}, v{8+r} row_ror:8 row_mask:0xf bank_mask:0xf")
    a(f"s_mov_b32 s47, {f32(-math.log2(math.e))}")
    for r in range(4): a(f"v_mul_f32 v{16+r}, s47, v{8+r}")
    for r in range(4): a(f"v_exp_f32 v{16+r}, v{16+r}")
    for r in range(4): a(f"v_add_f32 v{16+r}, 1.0, v{16+r}")
    for r in range(4): a(f"v_rcp_f32 v{16+r}, v{16+r}")
    for r in range(4): a(f"v_mul_f32 v{8+r}, v{8+r}, v{12+r}")
    for r in range(4): a(f"v_mul_f32 v{16+r}, v{16+r}, v25")
    for r in range(4): a(f"v_mul_f32 v{8+r}, v{8+r}, v{16+r}")
    a("v_cvt_pk_bf16_f32 v8, v8, v9"); a("v_cvt_pk_bf16_f32 v9, v10, v11")
    a("s_mov_b64 exec, 0xff")
    a("ds_write_b64 v20, v[8:9]")
    a("s_mov_b64 exec, -1")
    a("s_waitcnt lgkmcnt(0)")
    a("ds_read_b64 v[8:9], v21")
    a("s_waitcnt lgkmcnt(0)")
    for t in range(4): diag(AP5 + 4*t, 8 + t//2, t)
    for t in range(4):
        a(f"v_mfma_f32_16x16x32_bf16 v[{ACC}:{ACC+3}], v[{AP5+4*t}:{AP5+4*t+3}], a[{WD+4*t}:{WD+4*t+3}], v[{ACC}:{ACC+3}]")
    a(f"s_cmp_lg_u32 {sWV}, 0")
    a("s_cbranch_scc1 L_A_noffn")
    for t in range(4):
        a(f"v_mfma_f32_16x16x32_bf16 v[{ACC2}:{ACC2+3}], v[{AP5+4*t}:{AP5+4*t+3}], a[{WD2+4*t}:{WD2+4*t+3}], v[{ACC2}:{ACC2+3}]")
    a.label("L_A_noffn")
    poll([f"buffer_load_dwordx4 v[8:11], v30, {WS}, s49 offen sc1"], ["v11"])
    stamp(7)
    unpack24(8)
    xg_reduce_multi("v_add_f32", ["v8", "v9", "v10", "v11"], ["v12", "v13", "v14", "v15"])
    for r in range(4): a(f"v_mul_f32 v{8+r}, v{8+r}, v26")
    a("v_cvt_pk_bf16_f32 v8, v8, v9"); a("v_cvt_pk_bf16_f32 v9, v10, v11")
    a("s_mov_b64 exec, 0xffff")
    a("ds_write_b64 v22, v[8:9] offset:64")
    a("s_mov_b64 exec, -1")
    a("s_waitcnt lgkmcnt(0)")
    a("ds_read_b128 v[8:11], v23 offset:64")
    a("s_waitcnt lgkmcnt(0)")
    for t in range(8): diag(AP5 + 4*t, 8 + t//2, t)
    for t in range(8):
        a(f"v_mfma_f32_16x16x32_bf16 v[{ACC}:{ACC+3}], v[{AP5+4*t}:{AP5+4*t+3}], a[{WO+4*t}:{WO+4*t+3}], v[{ACC}:{ACC+3}]")
    a(f"s_cmp_lg_u32 {sWV}, 0")
    a("s_cbranch_scc1 L_A_st1")
    for t in range(8):
        a(f"v_mfma_f32_16x16x32_bf16 v[{ACC2}:{ACC2+3}], v[{AP5+4*t}:{AP5+4*t+3}], a[{WO2+4*t}:{WO2+4*t+3}], v[{ACC2}:{ACC2+3}]")
    pack24(148, ACC2)
    a(f"buffer_store_dwordx4 v[148:151], v24, {WS}, s51 offen sc1")
    a.label("L_A_st1")
    a("s_nop 7")
    pack24(144, ACC)
    a(f"buffer_store_dwordx4 v[144:147], v24, {WS}, s50 offen sc1")
    stamp(8)

    a.label("L_fin")
    if profile:
        stamp(10)
        a("s_waitcnt lgkmcnt(0)")
        a("s_mov_b64 exec, 1")
        a(f"s_lshl_b32 s40, s2, 2"); a(f"s_add_u32 s40, s40, {sWV}"); a("s_lshl_b32 s40, s40, 6"); a(f"s_add_u32 s40, s40, {WS_STAMP}")
        a("v_mov_b32 v4, 0")
        for i in range(11):
            a(f"v_mov_b32 v5, s{70+2*i}")
            a(f"buffer_store_dword v5, v4, {WS}, s40 offen offset:{4*i}")
    a.label("L_end")
    a("s_endpgm")
    a.label("L_code_end")
    a(f".fill ({CODE_PAD} - (L_code_end - {K})) / 4, 4, 0xBF810000")
    body = a.finish()
    tail = f""".section .rodata,"a"
.p2align 6
.amdhsa_kernel {K}
  .amdhsa_next_free_vgpr 512
  .amdhsa_next_free_sgpr 102
  .amdhsa_accum_offset 256
  .amdhsa_group_segment_fixed_size 0
  .amdhsa_kernarg_size 112
  .amdhsa_user_sgpr_count 2
  .amdhsa_user_sgpr_kernarg_segment_ptr 1
  .amdhsa_system_sgpr_workgroup_id_x 1
.end_amdhsa_kernel
"""
    return HEADER + f"; @launch grid=(256,1,1) block=(256,1,1) lds={LDS_BYTES}\n" + body + tail

if __name__ == "__main__":
    prof = len(sys.argv) > 2 and sys.argv[2] == "prof"
    open(sys.argv[1], "w").write(gen(prof))
```

```python
import sys, math, struct
from asmlib import Asm
K = "gated_mix__compressed_kv_cla__swiglu_ffn__decode_kernel"

WS_EPOCH = 0x0
SAFE = 0x80000
WS_H1 = 0x10000
WS_HF = 0x30000
WS_H4 = 0x50000
WS_H2 = 0x100000
WS_H5 = 0x180000
WS_H3 = 0x300000
WS_STAMP = 0x800000
CKV_STRIDE = 1040
L_QA = 128 * CKV_STRIDE
L_MAX = L_QA + 16384
L_SUM = L_MAX + 256
L_P = L_SUM + 256
L_G = L_P + 4096
L_ACT = L_G + 64
LDS_A_END = L_ACT + 1024
UV_BS = 1024 + 32
L_UV = 0
L_RED = 40960
L_QW = L_RED + 4096
L_FW = L_QW + 512
L_LAT = L_FW + 128
L_FIN = L_LAT + 1024
LDS_BYTES = (LDS_A_END + 255) // 256 * 256
CODE_PAD = 16384
NPF = CODE_PAD // 128 // 8

SCALE = (128 ** -0.5) * math.log2(math.e)
def f32(x): return "0x%08x" % struct.unpack("<I", struct.pack("<f", x))[0]
HEADER = open("gated_mix__compressed_kv_cla__swiglu_ffn__decode.s.ref").read().split("; @launch")[0]
MF = "v_mfma_f32_16x16x32_bf16"

def gen(profile=False, opts=None):
    opts = opts or {}
    a = Asm()
    def stamp(i):
        if profile: a(f"s_memrealtime s[{78+2*i}:{79+2*i}]")
    sWV, sX, sU, sH, sJ = "s3", "s4", "s5", "s6", "s7"
    X, WS, SA, SB, SC, SD = "s[8:11]", "s[12:15]", "s[16:19]", "s[20:23]", "s[24:27]", "s[28:31]"
    sTag, sE, sSpin, sT = "s36", "s37", "s38", "s39"
    sP0, sP1, sP2, sU0, sU1 = "s56", "s57", "s58", "s59", "s60"
    MASK0 = 62
    vL, vC, vG = "v1", "v2", "v3"
    selE = [f"v{32+r}" for r in range(4)]; selO = [f"v{36+r}" for r in range(4)]

    def srd_consts(base, nbytes):
        a(f"s_mov_b32 s{base+2}, {nbytes}"); a(f"s_mov_b32 s{base+3}, 0x00020000")
    def make_sels(t0, t1, t2, t3):
        a(f"v_and_b32 {t0}, 1, {vC}")
        a(f"v_lshlrev_b32 {t0}, 4, {t0}")
        a(f"v_mov_b32 {t1}, 0x0c0c0100"); a(f"v_mov_b32 {t2}, 0x0c0c0302"); a(f"v_mov_b32 {t3}, 0x0c0c0c0c")
        a(f"v_alignbit_b32 {t1}, {t1}, {t1}, {t0}")
        a(f"v_alignbit_b32 {t2}, {t2}, {t2}, {t0}")
        a(f"v_bfe_u32 {t0}, {vC}, 1, 2")
        for r in range(4):
            a(f"v_cmp_eq_u32 vcc, {r}, {t0}")
            a(f"v_cndmask_b32 {selE[r]}, {t3}, {t1}, vcc")
            a(f"v_cndmask_b32 {selO[r]}, {t3}, {t2}, vcc")
        a(f"s_mov_b32 {sP0}, 0x07060501"); a(f"s_mov_b32 {sP1}, 0x07060502"); a(f"s_mov_b32 {sP2}, 0x07060503")
        a(f"s_mov_b32 {sU0}, 0x0c04000c"); a(f"s_mov_b32 {sU1}, 0x04020100")
    def diag(dst, src, t):
        s = selO if (t & 1) else selE
        for r in range(4): a(f"v_perm_b32 v{dst+r}, v{src}, v{src}, {s[r]}")
    def pack24(dst, src):
        a(f"v_perm_b32 v{dst}, v{src}, v{src+3}, {sP0}")
        a(f"v_perm_b32 v{dst+1}, v{src+1}, v{src+3}, {sP1}")
        a(f"v_perm_b32 v{dst+2}, v{src+2}, v{src+3}, {sP2}")
    def unpack24(g):
        a(f"v_perm_b32 v{g+3}, v{g+1}, v{g}, {sU0}")
        a(f"v_perm_b32 v{g+3}, v{g+2}, v{g+3}, {sU1}")
    def sum4(b):
        a(f"v_pk_add_f32 v[{b}:{b+1}], v[{b}:{b+1}], v[{b+4}:{b+5}]"); a(f"v_pk_add_f32 v[{b+2}:{b+3}], v[{b+2}:{b+3}], v[{b+6}:{b+7}]")
        a(f"v_pk_add_f32 v[{b+8}:{b+9}], v[{b+8}:{b+9}], v[{b+12}:{b+13}]"); a(f"v_pk_add_f32 v[{b+10}:{b+11}], v[{b+10}:{b+11}], v[{b+14}:{b+15}]")
        a(f"v_pk_add_f32 v[{b}:{b+1}], v[{b}:{b+1}], v[{b+8}:{b+9}]"); a(f"v_pk_add_f32 v[{b+2}:{b+3}], v[{b+2}:{b+3}], v[{b+10}:{b+11}]")
    npoll = [0]
    def poll(loads, dual=None, first_issued=False, between=None):
        npoll[0] += 1
        L = f"L_poll{npoll[0]}"
        n = len(loads)
        def ld(i, so=None):
            d, vo, s, imm = loads[i]
            a(f"buffer_load_dwordx4 v[{d}:{d+3}], {vo}, {WS}, {so or s} offen offset:{imm} sc1")
        for i in range(n): ld(i)
        if between: between()
        a(f"s_branch {L}c")
        a.label(L)
        if dual:
            a(f"s_and_b32 {sT}, {sSpin}, {opts.get('safe_mask', 31)}")
            a(f"s_cselect_b32 {sT}, 0, {SAFE}")
            a(f"s_add_u32 {sT}, {sT}, {dual}")
        for i in range(n):
            a(f"s_mov_b64 exec, s[{MASK0+2*i}:{MASK0+2*i+1}]")
            ld(i, sT if dual else None)
        a("s_mov_b64 exec, -1")
        a(f"s_sub_u32 {sSpin}, {sSpin}, 1")
        a("s_cbranch_scc1 L_end")
        a.label(L + "c")
        a("s_waitcnt vmcnt(0)")
        for i in range(n):
            a(f"v_cmp_ne_u32 s[{MASK0+2*i}:{MASK0+2*i+1}], {sTag}, v{loads[i][0]+3}")
        if n == 1:
            a(f"s_cmp_lg_u64 s[{MASK0}:{MASK0+1}], 0")
        else:
            a(f"s_or_b64 vcc, s[{MASK0}:{MASK0+1}], s[{MASK0+2}:{MASK0+3}]")
            for i in range(2, n): a(f"s_or_b64 vcc, vcc, s[{MASK0+2*i}:{MASK0+2*i+1}]")
        a(f"s_cbranch_scc1 {L}")
    def publish_dual(data, voff, soff):
        a(f"buffer_store_dwordx4 v[{data}:{data+3}], {voff}, {WS}, {soff} offen")
        a(f"s_add_u32 {sT}, {soff}, {SAFE}")
        a(f"buffer_store_dwordx4 v[{data}:{data+3}], {voff}, {WS}, {sT} offen sc1")
    def xg_reduce_multi(op, vs, ts, swaps=("v_permlane16_swap_b32", "v_permlane32_swap_b32")):
        for sw in swaps:
            for v, t in zip(vs, ts): a(f"v_mov_b32 {t}, {v}")
            for v, t in zip(vs, ts): a(f"{sw} {v}, {t}")
            for v, t in zip(vs, ts): a(f"{op} {v}, {v}, {t}")
    def row_reduce(op, v, rors=(1, 2, 4, 8)):
        for r in rors: a(f"{op}_dpp {v}, {v}, {v} row_ror:{r} row_mask:0xf bank_mask:0xf")

    a(".amdgcn_target \"amdgcn-amd-amdhsa--gfx950\"")
    a(".text"); a(f".globl {K}"); a(".p2align 8"); a(f".type {K},@function"); a.label(K)
    stamp(0)
    a("s_load_dwordx2 s[8:9], s[0:1], 0")
    a("s_load_dwordx2 s[12:13], s[0:1], 104")
    a("s_cmp_ge_u32 s2, 128")
    a("s_cbranch_scc1 L_A_args")
    a("s_load_dwordx2 s[16:17], s[0:1], 16")
    a("s_load_dwordx2 s[20:21], s[0:1], 24")
    a("s_load_dwordx2 s[24:25], s[0:1], 32")
    a("s_load_dwordx2 s[28:29], s[0:1], 88")
    a("s_load_dwordx4 s[32:35], s[0:1], 56")
    srd_consts(16, 640*8192); srd_consts(20, 512*8192); srd_consts(24, 512*8192); srd_consts(28, 2560)
    a("s_branch L_common")
    a.label("L_A_args")
    a("s_cmp_ge_u32 s2, 256")
    a("s_cbranch_scc1 L_end")
    a("s_load_dwordx2 s[16:17], s[0:1], 8")
    a("s_load_dwordx2 s[20:21], s[0:1], 40")
    a("s_load_dwordx2 s[24:25], s[0:1], 72")
    a("s_load_dwordx2 s[28:29], s[0:1], 80")
    srd_consts(16, 2*4096*1024); srd_consts(20, 4096*1280); srd_consts(24, 1728*1280); srd_consts(28, 1280)
    a.label("L_common")
    srd_consts(8, 2560); srd_consts(12, 0x10000000)
    a("v_lshrrev_b32 v4, 6, v0")
    a(f"v_and_b32 {vL}, 63, v0")
    a(f"v_readfirstlane_b32 {sWV}, v4")
    a(f"v_and_b32 {vC}, 15, v0")
    a(f"v_bfe_u32 {vG}, v0, 4, 2")
    a(f"s_and_b32 {sX}, s2, 7")
    a(f"s_bfe_u32 {sU}, s2, 0x40003")
    a(f"s_and_b32 {sH}, {sU}, 3")
    a(f"s_lshl_b32 s40, {sX}, 2")
    a(f"s_add_u32 {sH}, {sH}, s40")
    a(f"s_lshr_b32 {sJ}, {sU}, 2")
    a(f"v_lshlrev_b32 v30, 4, {vL}")
    a(f"s_mov_b32 {sSpin}, 0x5ffff")
    a("s_cmp_ge_u32 s2, 128")
    a("s_cbranch_scc1 L_A")


    XF = 40; AP = 64; WQ = 104; PL = 144; AF = 176; UK = 224
    a(f"s_lshl_b32 s40, {sJ}, 2"); a(f"s_add_u32 s40, s40, {sWV}")
    a(f"v_lshrrev_b32 v4, 3, {vC}")
    a("v_mul_u32_u24 v4, 1280, v4")
    a(f"v_lshl_add_u32 v5, {vG}, 2, v4")
    a(f"v_lshl_add_u32 v4, {vG}, 4, v4")
    a("s_mul_i32 s41, s40, 80")
    a(f"v_lshlrev_b32 v6, 16, {vG}"); a(f"v_lshl_add_u32 v6, {vC}, 4, v6")
    a(f"v_lshlrev_b32 v7, 14, {vG}"); a(f"v_lshl_add_u32 v7, {vC}, 4, v7")
    a(f"s_mul_i32 s43, s40, {40*8192}")
    a(f"s_lshl_b32 s42, {sH}, 8")
    a("s_add_u32 s43, s43, s42")
    a(f"v_lshrrev_b32 v8, 2, {vC}")
    a(f"v_and_b32 v9, 3, {vC}")
    a("v_lshl_add_u32 v8, v8, 3, v9")
    a("v_lshlrev_b32 v8, 13, v8")
    a(f"v_lshl_add_u32 v8, {vG}, 4, v8")
    a("s_lshl_b32 s44, s40, 18"); a("s_add_u32 s44, s44, s42")
    a(f"s_add_u32 s45, s44, {4*8192}")
    a("s_waitcnt lgkmcnt(0)")
    a(f"s_load_dword {sE}, s[12:13], {WS_EPOCH}")
    a(f"buffer_load_dwordx4 v[{XF}:{XF+3}], v4, {X}, s41 offen")
    a(f"buffer_load_dword v{XF+4}, v5, {X}, s41 offen offset:64")
    for t in range(10):
        a(f"buffer_load_dwordx4 v[{WQ+4*t}:{WQ+4*t+3}], {'v6' if t < 8 else 'v7'}, {SA}, s43 offen nt")
        if t < 9: a(f"s_add_u32 s43, s43, {8192 if t != 7 else 25*8192}")
    if opts.get('qbar', 1): a("s_barrier")
    for tau in range(2):
        for t in range(4):
            a(f"buffer_load_dwordx4 v[{UK+16*tau+4*t}:{UK+16*tau+4*t+3}], v8, {SB}, s{44+tau} offen offset:{64*t} nt")
    make_sels("v12", "v13", "v14", "v15")
    a(f"s_lshl_b32 s46, {sWV}, 10"); a(f"s_add_u32 s46, s46, {L_RED}")
    a("v_add_u32 v24, s46, v30")
    a(f"v_add_u32 v25, {L_RED}, v30")
    a(f"v_lshrrev_b32 v26, 1, {vG}"); a("v_lshlrev_b32 v26, 8, v26")
    a(f"v_lshl_add_u32 v26, {vC}, 4, v26")
    a(f"v_and_b32 v27, 1, {vG}"); a("v_lshl_add_u32 v26, v27, 3, v26"); a(f"v_add_u32 v26, {L_QW}, v26")
    a(f"v_and_b32 v27, 1, {vC}"); a("v_lshlrev_b32 v28, 8, v27"); a(f"v_lshl_add_u32 v28, {vG}, 4, v28"); a(f"v_add_u32 v28, {L_QW}, v28")
    a(f"v_lshrrev_b32 v29, 2, {vC}"); a("v_lshlrev_b32 v29, 17, v29"); a("v_lshl_add_u32 v29, v27, 16, v29")
    a(f"v_bfe_u32 v31, {vC}, 1, 1"); a("v_lshl_add_u32 v29, v31, 6, v29"); a(f"v_lshl_add_u32 v29, {vG}, 4, v29")
    a("v_cmp_ne_u32 s[52:53], 0, v31")
    a(f"s_lshl_b32 s47, {sH}, 4"); a("s_add_u32 s47, s47, s40"); a("s_lshl_b32 s47, s47, 7"); a(f"s_add_u32 s47, s47, {WS_H2}")
    a(f"s_lshl_b32 s48, {sH}, 12"); a(f"s_add_u32 s48, s48, {WS_H1}")
    a(f"s_lshl_b32 s49, {sJ}, 10"); a("s_add_u32 s49, s49, s48")
    a(f"s_mov_b32 s50, {f32(SCALE)}")
    a("s_waitcnt lgkmcnt(0)")
    a(f"s_add_u32 {sE}, {sE}, 1")
    a(f"s_and_b32 {sTag}, {sE}, 0xbfffbfff")
    a(f"v_mov_b32 v50, {sTag}"); a(f"v_mov_b32 v51, {sTag}")
    a("s_waitcnt vmcnt(18)")
    for t in range(10): diag(AP + 4*t, XF + t//2, t)
    for t in range(10):
        if t % 2 == 0: a(f"s_waitcnt vmcnt({16 - t})")
        c = "0" if t == 0 else "v[8:11]"
        a(f"{MF} v[8:11], v[{AP+4*t}:{AP+4*t+3}], v[{WQ+4*t}:{WQ+4*t+3}], {c}")
    stamp(1)
    a(f"s_cmp_eq_u32 {sWV}, 0")
    a("s_cbranch_scc1 L_Q_w0a")
    a("ds_write_b128 v24, v[8:11]")
    a("s_waitcnt lgkmcnt(0)")
    a("s_barrier")
    a("s_branch L_Q_qbar")
    a.label("L_Q_w0a")
    a("s_barrier")
    for i in range(1, 4): a(f"ds_read_b128 v[{8+4*i}:{11+4*i}], v25 offset:{1024*i}")
    a("s_waitcnt lgkmcnt(0)")
    a("s_nop 3")
    sum4(8)
    pack24(48, 8)
    publish_dual(48, "v30", "s49")
    stamp(2)
    poll([(8+4*i, "v30", "s48", 1024*i) for i in range(4)], dual="s48")
    stamp(3)
    for i in range(4): unpack24(8 + 4*i)
    sum4(8)
    a("v_cvt_pk_bf16_f32 v8, v8, v9"); a("v_cvt_pk_bf16_f32 v9, v10, v11")
    a("ds_write_b64 v26, v[8:9]")
    a(f"v_mov_b32 v50, {sTag}")
    a("s_waitcnt lgkmcnt(0)")
    a.label("L_Q_qbar")
    a("s_waitcnt vmcnt(0)")
    a("s_barrier")
    for t in range(4): a(f"ds_read_b128 v[{8+4*t}:{11+4*t}], v28 offset:{64*t}")
    for t in range(4):
        a(f"s_waitcnt lgkmcnt({3-t})")
        for tau in range(2):
            c = "0" if t == 0 else f"v[{56+4*tau}:{59+4*tau}]"
            a(f"{MF} v[{56+4*tau}:{59+4*tau}], v[{UK+16*tau+4*t}:{UK+16*tau+4*t+3}], v[{8+4*t}:{11+4*t}], {c}")
    for r in range(4): a(f"v_cndmask_b32 v{56+r}, v{56+r}, v{60+r}, s[52:53]")
    for r in range(4): a(f"v_mul_f32 v{56+r}, s50, v{56+r}")
    a("v_cvt_pk_bf16_f32 v48, v56, v57"); a("v_cvt_pk_bf16_f32 v49, v58, v59")
    a(f"buffer_store_dwordx4 v[48:51], v29, {WS}, s47 offen sc1")
    stamp(4)
    if opts.get('noP2', 0): a("s_branch L_fin")
    a(f"s_cmp_ge_u32 {sH}, 27")
    a("s_cbranch_scc1 L_Q_nof1")
    a(f"v_cmp_gt_u32 vcc, 8, {vC}")
    a("v_mov_b32 v8, s34"); a("v_mov_b32 v9, s35"); a("v_mov_b32 v10, s32"); a("v_mov_b32 v11, s33")
    a("v_cndmask_b32 v8, v8, v10, vcc"); a("v_cndmask_b32 v9, v9, v11, vcc")
    a(f"v_and_b32 v12, 7, {vC}"); a("v_lshlrev_b32 v12, 4, v12")
    a(f"s_mul_i32 s44, s40, {40*3456}"); a(f"s_lshl_b32 s45, {sH}, 7"); a("s_add_u32 s44, s44, s45")
    a("s_add_u32 s44, s44, 3456")
    a("v_add_u32 v12, s44, v12")
    a(f"v_mad_u32_u24 v10, {vG}, s51, v12") if False else None
    a(f"v_mul_u32_u24 v10, {8*3456}, {vG}"); a("v_add_u32 v10, v10, v12"); a("v_mov_b32 v11, 0")
    a(f"v_mul_u32_u24 v14, {2*3456}, {vG}"); a("v_add_u32 v14, v14, v12"); a(f"v_add_u32 v14, {32*3456}, v14"); a("v_mov_b32 v15, 0")
    a("v_lshl_add_u64 v[10:11], v[8:9], 0, v[10:11]")
    a("v_lshl_add_u64 v[14:15], v[8:9], 0, v[14:15]")
    a(f"s_mov_b32 s44, {2*3456}"); a("s_mov_b32 s45, 0")
    for t in range(10):
        ad = "v[10:11]" if t < 8 else "v[14:15]"
        a(f"global_load_dwordx4 v[{WQ+4*t}:{WQ+4*t+3}], {ad}, off offset:{-3456 if t % 2 == 0 else 0} nt")
        if t % 2 == 1 and t < 7: a("v_lshl_add_u64 v[10:11], v[10:11], 0, s[44:45]")
    a.label("L_Q_nof1")
    a(f"v_lshlrev_b32 v8, 13, {vG}"); a(f"v_lshl_add_u32 v8, {vC}, 4, v8")
    a("s_lshl_b32 s44, s40, 18"); a("s_add_u32 s44, s44, s42")
    a(f"s_mul_i32 s45, {sWV}, {8*UV_BS}")
    for i in range(8):
        a("s_mov_b32 m0, s45")
        a(f"s_add_u32 s45, s45, {UV_BS}")
        a(f"buffer_load_dwordx4 v8, {SC}, s44 offen nt lds")
        a(f"s_add_u32 s44, s44, {4*8192}")
    a(f"v_bfe_u32 v45, {vC}, 1, 2"); a("v_lshlrev_b32 v45, 10, v45")
    a(f"v_lshrrev_b32 v13, 3, {vC}"); a("v_lshl_add_u32 v45, v13, 7, v45")
    a("v_lshl_add_u32 v45, v27, 6, v45")
    a(f"v_lshl_add_u32 v45, {vG}, 4, v45")
    a(f"s_lshl_b32 s41, {sH}, 12"); a(f"s_lshl_b32 s43, {sJ}, 8"); a("s_add_u32 s41, s41, s43"); a(f"s_add_u32 s41, s41, {WS_HF}")
    a(f"v_mul_u32_u24 v46, {4*UV_BS}, {vG}")
    a(f"v_lshrrev_b32 v9, 2, {vC}"); a("v_lshl_add_u32 v46, v9, 8, v46")
    a(f"v_and_b32 v9, 3, {vC}"); a("v_lshl_add_u32 v46, v9, 3, v46")
    a(f"s_lshl_b32 s46, {sWV}, 6"); a("v_add_u32 v46, s46, v46")
    a(f"v_mul_u32_u24 v47, {8*768}, {vG}"); a(f"v_lshl_add_u32 v47, {vC}, 4, v47")
    a(f"s_lshl_b32 s48, {sH}, 2"); a(f"s_add_u32 s48, s48, {sJ}"); a(f"s_mul_i32 s48, s48, {32*768}"); a(f"s_add_u32 s48, s48, {WS_H3}")
    a(f"s_lshl_b32 s47, {sWV}, 8"); a("s_add_u32 s46, s48, s47")
    a(f"s_add_u32 s47, s46, {4*768}")
    a(f"v_and_b32 v26, 31, {vL}"); a("v_mul_u32_u24 v26, 768, v26"); a(f"v_lshrrev_b32 v9, 5, {vL}"); a("v_mul_u32_u24 v9, 384, v9"); a("v_add_u32 v26, v26, v9")
    a(f"v_lshlrev_b32 v28, 1, {vL}"); a(f"v_add_u32 v28, {L_FW}, v28")
    a("v_lshlrev_b32 v29, 6, v13"); a(f"v_lshl_add_u32 v29, {vG}, 4, v29"); a(f"v_add_u32 v29, {L_FW}, v29")
    a(f"s_lshl_b32 s50, {sWV}, 4"); a(f"v_add_u32 v9, s50, {vC}")
    a("v_cmp_le_u32 vcc, 24, v9")
    a("v_cndmask_b32 v10, 0, 1, vcc")
    a("v_mul_u32_u24 v11, 24, v10"); a("v_sub_u32 v9, v9, v11")
    a("v_mul_u32_u24 v42, 320, v10")
    a("v_and_b32 v11, 3, v9"); a("v_mul_u32_u24 v11, 80, v11"); a("v_add_u32 v42, v42, v11")
    a("v_lshrrev_b32 v11, 2, v9"); a("v_cmp_eq_u32 s[32:33], 5, v11")
    a("v_mul_u32_u24 v11, 12, v11"); a("v_add_u32 v42, v42, v11")
    a(f"v_and_b32 v11, 1, {vG}"); a("v_lshl_add_u32 v42, v11, 3, v42"); a(f"v_add_u32 v42, {L_LAT}, v42")
    a(f"v_lshrrev_b32 v9, 1, {vG}")
    a("v_cmp_eq_u32 s[54:55], v9, v10")
    a("v_cmp_eq_u32 vcc, 0, v11")
    a("s_and_b64 s[34:35], s[54:55], vcc")
    a("v_mul_u32_u24 v43, 320, v27"); a(f"v_lshl_add_u32 v43, {vG}, 4, v43"); a(f"v_add_u32 v43, {L_LAT}, v43")
    a("v_lshlrev_b32 v44, 7, v31"); a("v_lshl_add_u32 v44, v27, 6, v44"); a(f"v_lshl_add_u32 v44, {vG}, 4, v44")
    a(f"s_lshl_b32 s50, {sH}, 2"); a(f"s_add_u32 s50, s50, {sWV}"); a("s_lshl_b32 s50, s50, 2"); a(f"s_add_u32 s50, s50, {sJ}")
    a("s_lshl_b32 s50, s50, 8"); a(f"s_add_u32 s50, s50, {WS_H4}")
    a(f"s_cmp_ge_u32 {sH}, 27")
    a("s_cbranch_scc1 L_Q_uvbar")
    for t in range(10):
        if t % 2 == 0: a(f"s_waitcnt vmcnt({16 - t})")
        c = "0" if t == 0 else "v[8:11]"
        a(f"{MF} v[8:11], v[{AP+4*t}:{AP+4*t+3}], v[{WQ+4*t}:{WQ+4*t+3}], {c}")
    a(f"s_cmp_eq_u32 {sWV}, 0")
    a("s_cbranch_scc1 L_Q_w0b")
    a("ds_write_b128 v24, v[8:11]")
    a("s_waitcnt lgkmcnt(0)")
    a("s_barrier")
    a("s_branch L_Q_uvbar")
    a.label("L_Q_w0b")
    a("s_barrier")
    for i in range(1, 4): a(f"ds_read_b128 v[{8+4*i}:{11+4*i}], v25 offset:{1024*i}")
    a("s_waitcnt lgkmcnt(0)")
    a("s_nop 3")
    sum4(8)
    pack24(48, 8)
    publish_dual(48, "v45", "s41")
    a.label("L_Q_uvbar")
    a("s_waitcnt vmcnt(0)")
    a("s_barrier")
    stamp(5)
    if opts.get('noA', 0) or opts.get('stopS3', 0): a("s_branch L_fin")
    for tau in range(2):
        for t in range(4):
            for hh in range(2):
                off = (16*(t >> 1) + (t & 1) + 2*hh) * UV_BS + tau*32
                r = UK + 16*tau + 4*t + 2*hh
                a(f"ds_read_b64_tr_b16 v[{r}:{r+1}], v46 offset:{off}")
    a(f"s_cmp_lg_u32 {sWV}, 3")
    a("s_cbranch_scc1 L_Q_h3w")
    poll([(12, "v26", "s48", 320)])
    a("s_barrier")
    stamp(6)
    a("v_mov_b32 v16, v13")
    row_reduce("v_max_f32", "v16")
    xg_reduce_multi("v_max_f32", ["v16"], ["v17"], swaps=("v_permlane16_swap_b32",))
    a("v_sub_f32 v16, v13, v16"); a("v_exp_f32 v16, v16")
    a("v_mul_f32 v18, v16, v14")
    row_reduce("v_add_f32", "v18")
    xg_reduce_multi("v_add_f32", ["v18"], ["v17"], swaps=("v_permlane16_swap_b32",))
    a("v_rcp_f32 v18, v18")
    a("v_mul_f32 v16, v16, v18")
    a("v_cvt_pk_bf16_f32 v16, v16, v16")
    a("ds_write_b16 v28, v16")
    a("s_waitcnt lgkmcnt(0)")
    a("s_barrier")
    a("s_branch L_Q_b2")
    a.label("L_Q_h3w")
    a("s_barrier")
    def mid():
        a("s_barrier")
        a("ds_read_b128 v[16:19], v29")
        a("s_waitcnt lgkmcnt(0)")
        for t in range(8): diag(AF + 4*t, 16 + t//2, t)
    poll([(PL+4*t, "v47", f"s{46 + t//4}", (t % 4)*768) for t in range(8)], between=mid)
    stamp(7)
    a("s_mov_b64 exec, s[32:33]")
    for t in range(8):
        a(f"v_mov_b32 v{PL+4*t+1}, 0"); a(f"v_mov_b32 v{PL+4*t+2}, 0")
    a("s_mov_b64 exec, -1")
    for t in range(8):
        c = "0" if t == 0 else "v[16:19]"
        a(f"{MF} v[16:19], v[{AF+4*t}:{AF+4*t+3}], v[{PL+4*t}:{PL+4*t+3}], {c}")
    a("v_cvt_pk_bf16_f32 v20, v16, v17"); a("v_cvt_pk_bf16_f32 v21, v18, v19")
    a("s_mov_b64 exec, s[54:55]")
    a("ds_write_b32 v42, v20")
    a("s_mov_b64 exec, s[34:35]")
    a("ds_write_b32 v42, v21 offset:4")
    a("s_mov_b64 exec, -1")
    a.label("L_Q_b2")
    a("s_waitcnt lgkmcnt(0)")
    a("s_barrier")
    for t in range(4): a(f"ds_read_b128 v[{8+4*t}:{11+4*t}], v43 offset:{80*t}")
    for t in range(4):
        a(f"s_waitcnt lgkmcnt({3-t})")
        for tau in range(2):
            c = "0" if t == 0 else f"v[{56+4*tau}:{59+4*tau}]"
            a(f"{MF} v[{56+4*tau}:{59+4*tau}], v[{UK+16*tau+4*t}:{UK+16*tau+4*t+3}], v[{8+4*t}:{11+4*t}], {c}")
    for r in range(4): a(f"v_cndmask_b32 v{56+r}, v{56+r}, v{60+r}, s[52:53]")
    pack24(48, 56)
    a("s_mov_b64 exec, 0x000f000f000f000f") if False else None
    a("s_mov_b32 exec_lo, 0x000f000f"); a("s_mov_b32 exec_hi, 0x000f000f")
    publish_dual(48, "v44", "s50")
    a("s_mov_b64 exec, -1")
    stamp(8)
    a("s_cmp_ge_u32 s2, 40")
    a("s_cbranch_scc1 L_fin")
    a("v_lshlrev_b32 v30, 4, v0")
    a(f"s_lshl_b32 s46, s2, 14"); a(f"s_add_u32 s46, s46, {WS_H5}")
    a(f"s_add_u32 s47, s46, 4096"); a(f"s_add_u32 s48, s46, 8192"); a(f"s_add_u32 s49, s46, 12288")
    a(f"v_and_b32 v24, 7, {vL}")
    a(f"s_lshl_b32 s50, {sWV}, 7"); a(f"s_add_u32 s50, s50, {L_FIN}")
    a("v_lshl_add_u32 v25, v24, 4, s50")
    a(f"v_lshlrev_b32 v26, 4, v24"); a(f"v_add_u32 v26, {L_FIN}, v26")
    a("s_lshr_b32 s51, s2, 3")
    a("s_bfe_u32 s54, s2, 0x20001")
    a("s_and_b32 s55, s2, 1")
    a("s_lshr_b32 s40, s54, 1"); a("s_mul_i32 s40, s40, 1280")
    a("s_lshl_b32 s51, s51, 8"); a("s_add_u32 s40, s40, s51")
    a("s_lshl_b32 s55, s55, 7"); a("s_add_u32 s40, s40, s55")
    a("s_and_b32 s54, s54, 1"); a("s_lshl_b32 s54, s54, 3"); a("s_add_u32 s40, s40, s54")
    a("v_lshlrev_b32 v27, 4, v24")
    poll([(8+4*i, "v30", f"s{46+i}", 0) for i in range(4)])
    stamp(9)
    for i in range(4): unpack24(8 + 4*i)
    sum4(8)
    for r in range(4): a(f"v_add_f32_dpp v{8+r}, v{8+r}, v{8+r} row_ror:8 row_mask:0xf bank_mask:0xf")
    xg_reduce_multi("v_add_f32", ["v8", "v9", "v10", "v11"], ["v12", "v13", "v14", "v15"])
    a("s_mov_b64 exec, 0xff")
    a("ds_write_b128 v25, v[8:11]")
    a("s_waitcnt lgkmcnt(0)")
    a("s_barrier")
    a(f"s_cmp_lg_u32 {sWV}, 0")
    a("s_cbranch_scc1 L_fin")
    for i in range(1, 4): a(f"ds_read_b128 v[{8+4*i}:{11+4*i}], v26 offset:{128*i}")
    a("s_waitcnt lgkmcnt(0)")
    sum4(8)
    a("v_cvt_pk_bf16_f32 v8, v8, v9"); a("v_cvt_pk_bf16_f32 v9, v10, v11")
    a(f"buffer_store_dwordx2 v[8:9], v27, {SD}, s40 offen")
    a("s_cmp_lg_u32 s2, 0")
    a("s_cbranch_scc1 L_fin")
    a("s_mov_b64 exec, 1")
    a(f"v_mov_b32 v10, {sE}"); a("v_mov_b32 v11, 0")
    a(f"buffer_store_dword v10, v11, {WS}, 0 offen offset:{WS_EPOCH} sc1")
    a("s_branch L_fin")

    a.label("L_A")
    if opts.get('noA', 0): a("s_waitcnt lgkmcnt(0)"); a("s_branch L_fin")
    sB_, sS_, sHG = "s40", "s41", "s42"
    a(f"s_lshr_b32 {sB_}, {sX}, 2")
    a(f"s_and_b32 {sS_}, {sX}, 3"); a(f"s_lshl_b32 {sS_}, {sS_}, 3"); a(f"s_and_b32 s43, {sU}, 7"); a(f"s_add_u32 {sS_}, {sS_}, s43")
    a(f"s_lshr_b32 {sHG}, {sU}, 3")
    a(f"s_lshl_b32 s44, {sB_}, 5"); a(f"s_add_u32 s44, s44, {sS_}"); a("s_lshl_b32 s44, s44, 2"); a(f"s_add_u32 s44, s44, {sWV}"); a("s_lshl_b32 s44, s44, 15")
    a(f"s_mul_i32 s45, {sWV}, {32*CKV_STRIDE}")
    a(f"s_add_u32 s46, s45, {32*CKV_STRIDE}")
    a(f"v_lshlrev_b32 v4, 2, {vL}")
    a(f"s_cmp_lg_u32 {sWV}, 2")
    a("s_cbranch_scc1 L_A_nopf")
    a("s_getpc_b64 s[48:49]")
    a.label("L_pc1")
    a(f"s_sub_u32 s48, s48, L_pc1-{K}")
    a("s_subb_u32 s49, s49, 0")
    a(f"s_mul_i32 s43, s43, {NPF*128}")
    a(f"v_lshl_add_u32 v10, {vL}, 7, s43")
    a(f"s_mov_b64 exec, {(1<<NPF)-1}")
    a("global_load_dword v11, v10, s[48:49]")
    a("s_mov_b64 exec, -1")
    a.label("L_A_nopf")
    a("s_waitcnt lgkmcnt(0)")
    a(f"s_load_dword {sE}, s[12:13], {WS_EPOCH}")
    a(f"s_cmp_lg_u32 {sWV}, 3")
    a("s_cbranch_scc1 L_A_dma")
    a(f"buffer_load_dwordx4 v[40:43], v30, {X}, 0 offen"); a(f"buffer_load_dword v44, v4, {X}, 0 offen offset:1024")
    a(f"buffer_load_dwordx4 v[48:51], v30, {X}, 0 offen offset:1280"); a(f"buffer_load_dword v52, v4, {X}, 0 offen offset:2304")
    a(f"buffer_load_dwordx4 v[56:59], v30, {SD}, 0 offen"); a(f"buffer_load_dword v60, v4, {SD}, 0 offen offset:1024")
    a.label("L_A_dma")
    a("s_mov_b32 m0, s45")
    a(f"s_add_u32 s45, s45, {CKV_STRIDE}")
    a(f"buffer_load_dwordx4 v30, {SA}, s44 offen nt lds")
    a("s_add_u32 s44, s44, 1024")
    a("s_cmp_lt_u32 s45, s46")
    a("s_cbranch_scc1 L_A_dma")
    make_sels("v8", "v9", "v10", "v11")
    a("s_waitcnt lgkmcnt(0)")
    a(f"s_add_u32 {sE}, {sE}, 1")
    a(f"s_and_b32 {sTag}, {sE}, 0xbfffbfff")
    a(f"s_cmp_lg_u32 {sWV}, 3")
    a("s_cbranch_scc1 L_A_nogate")
    a("s_waitcnt vmcnt(32)")
    a("v_mov_b32 v8, 0"); a("v_mov_b32 v9, 0")
    for i in range(5):
        a(f"v_dot2_f32_bf16 v8, v{40+i}, v{56+i}, v8")
        a(f"v_dot2_f32_bf16 v9, v{48+i}, v{56+i}, v9")
    a("s_nop 2")
    for r in (1, 2, 4, 8):
        a(f"v_add_f32_dpp v8, v8, v8 row_ror:{r} row_mask:0xf bank_mask:0xf")
        a(f"v_add_f32_dpp v9, v9, v9 row_ror:{r} row_mask:0xf bank_mask:0xf")
    xg_reduce_multi("v_add_f32", ["v8", "v9"], ["v10", "v11"])
    a(f"s_mov_b32 s47, {f32(-math.log2(math.e))}")
    a("v_mul_f32 v8, s47, v8"); a("v_mul_f32 v9, s47, v9")
    a("v_exp_f32 v8, v8"); a("v_exp_f32 v9, v9")
    a("v_add_f32 v8, 1.0, v8"); a("v_add_f32 v9, 1.0, v9")
    a("v_rcp_f32 v8, v8"); a("v_rcp_f32 v9, v9")
    a("v_sub_f32 v10, 1.0, v8"); a("v_sub_f32 v11, 1.0, v9")
    a(f"v_mov_b32 v12, {L_G}")
    a("ds_write_b128 v12, v[8:11]")
    a.label("L_A_nogate")
    a(f"v_mul_u32_u24 v8, {CKV_STRIDE}, {vC}"); a(f"v_lshl_add_u32 v8, {vG}, 4, v8")
    a(f"s_mul_i32 s45, {sWV}, {32*CKV_STRIDE}"); a("v_add_u32 v8, s45, v8")
    a(f"s_and_b32 s44, {sX}, 3"); a("s_lshl_b32 s44, s44, 17"); a(f"s_lshl_b32 s45, {sB_}, 16"); a("s_add_u32 s44, s44, s45")
    a(f"s_lshl_b32 s45, {sHG}, 15"); a("s_add_u32 s44, s44, s45"); a(f"s_lshl_b32 s45, {sWV}, 13"); a("s_add_u32 s44, s44, s45")
    a(f"s_add_u32 s44, s44, {WS_H2}"); a("s_add_u32 s45, s44, 4096")
    a(f"v_lshrrev_b32 v4, 3, {vL}"); a(f"v_and_b32 v5, 3, {vL}"); a(f"v_bfe_u32 v6, {vL}, 2, 1")
    a("v_lshlrev_b32 v7, 10, v4"); a("v_lshl_add_u32 v7, v5, 8, v7"); a("v_lshl_add_u32 v7, v6, 3, v7"); a(f"v_add_u32 v7, {L_QA}, v7")
    a("v_and_b32 v4, 3, v4"); a("v_lshl_add_u32 v4, v4, 2, v5")
    a(f"s_lshl_b32 s46, {sWV}, 2"); a("v_xor_b32 v4, s46, v4")
    for hh in range(4):
        a(f"v_xor_b32 v5, {hh}, v4")
        a(f"v_lshl_add_u32 v{12+hh}, v5, 4, v7")
    a(f"v_xor_b32 v4, {vG}, {vC}"); a(f"v_lshlrev_b32 v5, 8, {vG}"); a(f"v_add_u32 v5, {L_QA}, v5")
    for k in range(4):
        a(f"v_xor_b32 v6, {4*k}, v4")
        a(f"v_lshl_add_u32 v{16+k}, v6, 4, v5")
    a(f"v_lshrrev_b32 v9, 2, {vC}"); a(f"v_lshl_add_u32 v9, {vG}, 2, v9"); a(f"v_mul_u32_u24 v20, {CKV_STRIDE}, v9")
    a(f"v_bfe_u32 v9, {vC}, 1, 1"); a("v_lshl_add_u32 v20, v9, 7, v20")
    a(f"v_and_b32 v9, 1, {vC}"); a("v_lshl_add_u32 v20, v9, 3, v20")
    a(f"s_lshl_b32 s46, {sWV}, 8"); a("v_add_u32 v20, s46, v20")
    a(f"v_add_u32 v21, {64*CKV_STRIDE}, v20")
    a(f"v_lshlrev_b32 v22, 4, {vC}"); a(f"v_add_u32 v22, {L_MAX}, v22")
    a(f"s_lshl_b32 s46, {sWV}, 2"); a("v_add_u32 v23, s46, v22")
    a(f"v_add_u32 v24, {L_P}, v30"); a(f"s_lshl_b32 s46, {sWV}, 10"); a("v_add_u32 v25, s46, v24")
    a(f"v_and_b32 v26, 7, {vC}"); a(f"v_mul_u32_u24 v26, {4*32*768}, v26"); a(f"v_lshrrev_b32 v9, 3, {vC}"); a("v_lshl_add_u32 v26, v9, 6, v26"); a(f"v_lshl_add_u32 v26, {vG}, 4, v26")
    a(f"s_lshl_b32 s46, {sHG}, 6"); a(f"s_add_u32 s46, s46, {sWV}"); a("s_lshl_b32 s46, s46, 5"); a(f"s_add_u32 s46, s46, {sS_}")
    a("s_mul_i32 s46, s46, 768"); a(f"s_mul_i32 s47, {sB_}, 384"); a("s_add_u32 s46, s46, s47"); a(f"s_add_u32 s46, s46, {WS_H3}")
    a(f"s_add_u32 s47, s46, {8*4*32*768}")
    a(f"v_mul_u32_u24 v27, {8*1280}, {vG}"); a(f"v_lshl_add_u32 v27, {vC}, 4, v27")
    a(f"v_mul_u32_u24 v29, {4*1280}, {vG}"); a(f"v_lshl_add_u32 v29, {vC}, 4, v29")
    a(f"s_lshl_b32 s32, {sH}, 2"); a(f"s_add_u32 s32, s32, {sJ}")
    a(f"s_mul_i32 s33, s32, {32*1280}"); a(f"s_lshl_b32 s34, {sWV}, 8"); a("s_add_u32 s33, s33, s34")
    a(f"s_mul_i32 s48, s32, {16*1280}"); a("s_add_u32 s48, s48, s34")
    a(f"s_add_u32 s49, s48, {2*1280}")
    OG = 192
    for i in range(6): a(f"v_mov_b32 v{OG+4*i+3}, {sTag}")
    a("s_waitcnt vmcnt(16)")
    for t in range(16): a(f"ds_read_b128 a[{4*t}:{4*t+3}], v8 offset:{64*t}")
    a("s_waitcnt vmcnt(0)")
    stamp(1)
    HG = 40
    def mid2():
        for t in range(16): a(f"ds_read_b128 a[{64+4*t}:{64+4*t+3}], v8 offset:{16*CKV_STRIDE + 64*t}")
    poll([(HG+4*i, "v30", f"s{44 + i//4}", (i % 4)*1024) for i in range(8)], between=mid2)
    stamp(2)
    for i in range(8):
        a(f"ds_write_b64 v{12 + i//2}, v[{HG+4*i}:{HG+4*i+1}] offset:{8192*(i%2)}")
    a("s_waitcnt lgkmcnt(0)")
    a("s_barrier")
    QF = 72; SACC = 136; PF = 144; OACC = 160
    WD, WO, WD2, WO2 = 216, 40, 0, 16
    def wd_loads(f, dst, extra):
        for t in range(4):
            a(f"buffer_load_dwordx4 {f}[{dst+4*t}:{dst+4*t+3}], v29, {SC}, s{48 + t//2} offen offset:{(t%2)*1280 + extra} nt")
    def wo_loads(f, dst, extra, ts):
        for t in ts:
            if t % 2 == 0: a(f"s_add_u32 s50, s33, {t*1280}")
            a(f"buffer_load_dwordx4 {f}[{dst+4*t}:{dst+4*t+3}], v27, {SB}, s50 offen offset:{(t%2)*1280 + extra} nt")
    for t in range(8): a(f"ds_read_b128 v[{QF+4*t}:{QF+4*t+3}], v{16 + (t & 3)} offset:{1024*t}")
    for t in range(16):
        if t + 8 < 16:
            a(f"ds_read_b128 v[{QF+4*(t+8)}:{QF+4*(t+8)+3}], v{16 + (t & 3)} offset:{1024*(t+8)}")
            a("s_waitcnt lgkmcnt(8)")
        else:
            a(f"s_waitcnt lgkmcnt({15-t})")
        for tau in range(2):
            c = "0" if t == 0 else f"v[{SACC+4*tau}:{SACC+4*tau+3}]"
            a(f"{MF} v[{SACC+4*tau}:{SACC+4*tau+3}], a[{64*tau+4*t}:{64*tau+4*t+3}], v[{QF+4*t}:{QF+4*t+3}], {c}")
        if opts.get('early_w', 1):
            if t == 9: wd_loads("v", WD, 0)
            if t == 12: wo_loads("v", WO, 0, [0, 1])
    def tr_reads(ns):
        for n in ns:
            for w in range(4):
                for hh in range(2):
                    base = "v20" if w < 2 else "v21"
                    off = (32*(w & 1) + 16*hh) * CKV_STRIDE + 16*n
                    r = 128 + 16*n + 4*w + 2*hh
                    a(f"ds_read_b64_tr_b16 a[{r}:{r+1}], {base} offset:{off}")
    stamp(3)
    tr_reads([0])
    S = SACC
    a(f"v_max3_f32 v4, v{S}, v{S+1}, v{S+2}"); a(f"v_max3_f32 v5, v{S+3}, v{S+4}, v{S+5}")
    a(f"v_max3_f32 v4, v4, v{S+6}, v{S+7}"); a("v_max_f32 v4, v4, v5")
    xg_reduce_multi("v_max_f32", ["v4"], ["v5"])
    a("ds_write_b32 v23, v4")
    a("s_waitcnt lgkmcnt(0)")
    a("s_barrier")
    a("ds_read_b128 v[4:7], v22")
    tr_reads([1])
    a("s_waitcnt lgkmcnt(8)")
    a("v_max3_f32 v4, v4, v5, v6"); a("v_max_f32 v28, v4, v7")
    for r in range(8): a(f"v_sub_f32 v{S+r}, v{S+r}, v28")
    for r in range(8): a(f"v_exp_f32 v{S+r}, v{S+r}")
    for r in range(4): a(f"v_cvt_pk_bf16_f32 v{4+r}, v{S+2*r}, v{S+2*r+1}")
    a("ds_write_b128 v25, v[4:7]")
    a(f"v_add_f32 v9, v{S}, v{S+1}"); a(f"v_add_f32 v10, v{S+2}, v{S+3}"); a(f"v_add_f32 v11, v{S+4}, v{S+5}"); a(f"v_add_f32 v12, v{S+6}, v{S+7}")
    a("v_add_f32 v9, v9, v10"); a("v_add_f32 v11, v11, v12"); a("v_add_f32 v9, v9, v11")
    xg_reduce_multi("v_add_f32", ["v9"], ["v10"])
    a(f"ds_write_b32 v23, v9 offset:{L_SUM - L_MAX}")
    a("s_waitcnt lgkmcnt(0)")
    a("s_barrier")
    stamp(4)
    for w in range(4): a(f"ds_read_b128 v[{PF+4*w}:{PF+4*w+3}], v24 offset:{1024*w}")
    a(f"ds_read_b128 v[4:7], v22 offset:{L_SUM - L_MAX}")
    def pk(nn):
        for half in range(2):
            p = 2*nn + half
            a(f"v_cvt_pk_bf16_f32 v{OG + 4*(p//3) + p%3}, v{OACC+4*nn+2*half}, v{OACC+4*nn+2*half+1}")
    def shuffle_store(l):
        g0 = OG + 8*l; g1 = g0 + 4
        for d in range(3): a(f"v_mov_b32 v{12+d}, v{g0+d}")
        for d in range(3): a(f"v_mov_b32_dpp v{g0+d}, v{g1+d} row_ror:8 row_mask:0xf bank_mask:0xc")
        for d in range(3): a(f"v_mov_b32_dpp v{g1+d}, v{12+d} row_ror:8 row_mask:0xf bank_mask:0x3")
        a(f"buffer_store_dwordx4 v[{g0}:{g0+3}], v26, {WS}, s46 offen offset:{128*l} sc1")
        a(f"buffer_store_dwordx4 v[{g1}:{g1+3}], v26, {WS}, s47 offen offset:{128*l} sc1")
    for n in range(8):
        if n + 2 < 8:
            tr_reads([n + 2])
            if n == 0: a("s_waitcnt lgkmcnt(8)")
            elif n >= 2: a("s_waitcnt lgkmcnt(15)")
        elif n == 6: a("s_waitcnt lgkmcnt(8)")
        else: a("s_waitcnt lgkmcnt(0)")
        for w in range(4):
            c = "0" if w == 0 else f"v[{OACC+4*n}:{OACC+4*n+3}]"
            a(f"{MF} v[{OACC+4*n}:{OACC+4*n+3}], a[{128+16*n+4*w}:{128+16*n+4*w+3}], v[{PF+4*w}:{PF+4*w+3}], {c}")
        if n == 1:
            a("v_add_f32 v4, v4, v5"); a("v_add_f32 v6, v6, v7"); a(f"v_add_f32 v{OG+22}, v4, v6"); a(f"v_mov_b32 v{OG+21}, v28")
        if n >= 2: pk(n - 2)
        if n == 4: shuffle_store(0)
        if n == 7: shuffle_store(1)
    pk(6); pk(7)
    shuffle_store(2)
    stamp(5)
    if opts.get('drain', 0):
        a("s_waitcnt vmcnt(0)"); stamp(9); a("s_barrier")
    if opts.get('stopS3', 0): a("s_branch L_fin")
    if not opts.get('early_w', 1):
        wd_loads("v", WD, 0); wo_loads("v", WO, 0, [0, 1])
    wo_loads("v", WO, 0, [2, 3, 4, 5, 6, 7])
    a(f"s_cmp_lg_u32 {sWV}, 0")
    a("s_cbranch_scc1 L_A_w0l")
    wd_loads("a", WD2, 1024)
    wo_loads("a", WO2, 1024, range(8))
    a.label("L_A_w0l")
    a(f"v_mov_b32 v14, {L_G}")
    a("ds_read_b128 v[16:19], v14")
    a(f"s_lshl_b32 s46, {sWV}, 8"); a(f"s_add_u32 s46, s46, {L_ACT}")
    a(f"v_bfe_u32 v4, {vL}, 1, 1")
    a(f"v_bfe_u32 v5, {vL}, 2, 1"); a(f"v_and_b32 v6, 1, {vL}")
    a("v_lshlrev_b32 v20, 5, v4"); a("v_lshl_add_u32 v20, v5, 4, v20"); a("v_lshl_add_u32 v20, v6, 3, v20"); a("v_add_u32 v20, s46, v20")
    a("v_cmp_ne_u32 s[52:53], 0, v4")
    a(f"v_lshrrev_b32 v7, 3, {vC}")
    a("v_lshlrev_b32 v21, 5, v7"); a(f"v_lshl_add_u32 v21, {vG}, 3, v21"); a("v_add_u32 v21, s46, v21")
    a(f"v_bfe_u32 v6, {vL}, 3, 1"); a(f"v_and_b32 v4, 3, {vL}")
    a("v_lshlrev_b32 v22, 6, v5"); a("v_lshl_add_u32 v22, v6, 5, v22"); a("v_lshl_add_u32 v22, v4, 3, v22"); a("v_add_u32 v22, s46, v22")
    a("v_cmp_ne_u32 s[54:55], 0, v5")
    a("v_lshlrev_b32 v23, 6, v7"); a(f"v_lshl_add_u32 v23, {vG}, 4, v23"); a("v_add_u32 v23, s46, v23")
    a(f"s_lshl_b32 s47, s32, 10"); a(f"s_add_u32 s48, s47, {WS_HF}"); a(f"s_add_u32 s49, s47, {WS_H4}")
    a(f"v_lshrrev_b32 v24, 3, {vL}"); a("v_lshlrev_b32 v24, 14, v24"); a(f"v_and_b32 v4, 7, {vL}"); a("v_lshl_add_u32 v24, v4, 4, v24")
    a("s_sub_u32 s50, s2, 128"); a("s_lshl_b32 s50, s50, 7"); a(f"s_add_u32 s50, s50, {WS_H5}")
    a(f"s_add_u32 s51, s50, {4*8*16384}")
    a(f"s_lshl_b32 s47, {sWV}, 17"); a("s_add_u32 s50, s50, s47")
    a("s_waitcnt lgkmcnt(0)")
    a("v_cndmask_b32 v25, v18, v19, s[52:53]")
    a("v_cndmask_b32 v26, v16, v17, s[54:55]")
    AP5 = 72; ACC = 136; ACC2 = 140
    for r in range(8): a(f"v_mov_b32 v{ACC+r}, 0")
    a(f"v_mov_b32 v147, {sTag}"); a(f"v_mov_b32 v151, {sTag}")
    a(f"s_cmp_ge_u32 {sH}, 27")
    a("s_cbranch_scc1 L_A_noffn")
    poll([(8, "v30", "s48", 0)], dual="s48")
    stamp(6)
    unpack24(8)
    xg_reduce_multi("v_add_f32", ["v8", "v9", "v10", "v11"], ["v12", "v13", "v14", "v15"])
    for r in range(4): a(f"v_mov_b32_dpp v{12+r}, v{8+r} row_ror:8 row_mask:0xf bank_mask:0xf")
    a(f"s_mov_b32 s47, {f32(-math.log2(math.e))}")
    for r in range(4): a(f"v_mul_f32 v{16+r}, s47, v{8+r}")
    for r in range(4): a(f"v_exp_f32 v{16+r}, v{16+r}")
    for r in range(4): a(f"v_add_f32 v{16+r}, 1.0, v{16+r}")
    for r in range(4): a(f"v_rcp_f32 v{16+r}, v{16+r}")
    for r in range(4): a(f"v_mul_f32 v{8+r}, v{8+r}, v{12+r}")
    for r in range(4): a(f"v_mul_f32 v{16+r}, v{16+r}, v25")
    for r in range(4): a(f"v_mul_f32 v{8+r}, v{8+r}, v{16+r}")
    a("v_cvt_pk_bf16_f32 v8, v8, v9"); a("v_cvt_pk_bf16_f32 v9, v10, v11")
    a("s_mov_b64 exec, 0xff")
    a("ds_write_b64 v20, v[8:9]")
    a("s_mov_b64 exec, -1")
    a("s_waitcnt lgkmcnt(0)")
    a("ds_read_b64 v[8:9], v21")
    a("s_waitcnt lgkmcnt(0)")
    for t in range(4): diag(AP5 + 4*t, 8 + t//2, t)
    for t in range(4):
        a(f"{MF} v[{ACC}:{ACC+3}], v[{AP5+4*t}:{AP5+4*t+3}], v[{WD+4*t}:{WD+4*t+3}], v[{ACC}:{ACC+3}]")
    a(f"s_cmp_lg_u32 {sWV}, 0")
    a("s_cbranch_scc1 L_A_noffn")
    for t in range(4):
        a(f"{MF} v[{ACC2}:{ACC2+3}], v[{AP5+4*t}:{AP5+4*t+3}], a[{WD2+4*t}:{WD2+4*t+3}], v[{ACC2}:{ACC2+3}]")
    a.label("L_A_noffn")
    poll([(8, "v30", "s49", 0)], dual="s49")
    stamp(7)
    unpack24(8)
    xg_reduce_multi("v_add_f32", ["v8", "v9", "v10", "v11"], ["v12", "v13", "v14", "v15"])
    for r in range(4): a(f"v_mul_f32 v{8+r}, v{8+r}, v26")
    a("v_cvt_pk_bf16_f32 v8, v8, v9"); a("v_cvt_pk_bf16_f32 v9, v10, v11")
    a("s_mov_b64 exec, 0xffff")
    a("ds_write_b64 v22, v[8:9] offset:64")
    a("s_mov_b64 exec, -1")
    a("s_waitcnt lgkmcnt(0)")
    a("ds_read_b128 v[8:11], v23 offset:64")
    a("s_waitcnt lgkmcnt(0)")
    diag(AP5, 8, 0); diag(AP5 + 4, 8, 1)
    for t in range(8):
        if t + 2 < 8: diag(AP5 + 4*(t+2), 8 + (t+2)//2, t+2)
        a(f"{MF} v[{ACC}:{ACC+3}], v[{AP5+4*t}:{AP5+4*t+3}], v[{WO+4*t}:{WO+4*t+3}], v[{ACC}:{ACC+3}]")
    a(f"s_cmp_lg_u32 {sWV}, 0")
    a("s_cbranch_scc1 L_A_st1")
    for t in range(8):
        a(f"{MF} v[{ACC2}:{ACC2+3}], v[{AP5+4*t}:{AP5+4*t+3}], a[{WO2+4*t}:{WO2+4*t+3}], v[{ACC2}:{ACC2+3}]")
    pack24(144, ACC)
    a(f"buffer_store_dwordx4 v[144:147], v24, {WS}, s50 offen sc1")
    pack24(148, ACC2)
    a(f"buffer_store_dwordx4 v[148:151], v24, {WS}, s51 offen sc1")
    a("s_branch L_A_done")
    a.label("L_A_st1")
    a("s_nop 6")
    pack24(144, ACC)
    a(f"buffer_store_dwordx4 v[144:147], v24, {WS}, s50 offen sc1")
    a.label("L_A_done")
    stamp(8)

    a.label("L_fin")
    if profile:
        stamp(10)
        a("s_waitcnt lgkmcnt(0)")
        a("s_mov_b64 exec, 1")
        a(f"s_lshl_b32 s40, s2, 2"); a(f"s_add_u32 s40, s40, {sWV}"); a("s_lshl_b32 s40, s40, 6"); a(f"s_add_u32 s40, s40, {WS_STAMP}")
        a("v_mov_b32 v4, 0")
        for i in range(11):
            a(f"v_mov_b32 v5, s{78+2*i}")
            a(f"buffer_store_dword v5, v4, {WS}, s40 offen offset:{4*i}")
    a.label("L_end")
    a("s_endpgm")
    a.label("L_code_end")
    a(f".fill ({CODE_PAD} - (L_code_end - {K})) / 4, 4, 0xBF810000")
    body = a.finish()
    tail = f""".section .rodata,"a"
.p2align 6
.amdhsa_kernel {K}
  .amdhsa_next_free_vgpr 512
  .amdhsa_next_free_sgpr 102
  .amdhsa_accum_offset 256
  .amdhsa_group_segment_fixed_size 0
  .amdhsa_kernarg_size 112
  .amdhsa_user_sgpr_count 2
  .amdhsa_user_sgpr_kernarg_segment_ptr 1
  .amdhsa_system_sgpr_workgroup_id_x 1
.end_amdhsa_kernel
"""
    return HEADER + f"; @launch grid=(256,1,1) block=(256,1,1) lds={LDS_BYTES}\n" + body + tail

if __name__ == "__main__":
    prof = len(sys.argv) > 2 and sys.argv[2] == "prof"
    opts = dict((kv.split("=")[0], int(kv.split("=")[1])) for kv in sys.argv[3:])
    open(sys.argv[1], "w").write(gen(prof, opts))
```

```python
import sys, math, struct
from asmlib import Asm
K = "gated_mix__compressed_kv_cla__swiglu_ffn__decode_kernel"

WS_EPOCH = 0x0
SAFE = 0x80000
WS_H1 = 0x10000
WS_HF = 0x30000
WS_H4 = 0x50000
WS_H2 = 0x100000
WS_H5 = 0x180000
WS_H3 = 0x300000
WS_STAMP = 0x800000
CKV_STRIDE = 1040
L_QA = 128 * CKV_STRIDE
L_MAX = L_QA + 16384
L_SUM = L_MAX + 256
L_P = L_SUM + 256
L_G = L_P + 4096
L_ACT = L_G + 64
LDS_A_END = L_ACT + 1024
UV_BS = 1024 + 32
L_UV = 0
L_RED = 40960
L_QW = L_RED + 4096
L_FW = L_QW + 512
L_LAT = L_FW + 128
L_FIN = L_LAT + 1024
LDS_BYTES = (LDS_A_END + 255) // 256 * 256
CODE_PAD = 16384
NPF = CODE_PAD // 128 // 8

SCALE = (128 ** -0.5) * math.log2(math.e)
def f32(x): return "0x%08x" % struct.unpack("<I", struct.pack("<f", x))[0]
HEADER = open("gated_mix__compressed_kv_cla__swiglu_ffn__decode.s.ref").read().split("; @launch")[0]
MF = "v_mfma_f32_16x16x32_bf16"

def gen(profile=False, opts=None):
    opts = opts or {}
    a = Asm()
    def stamp(i):
        if profile: a(f"s_memrealtime s[{78+2*i}:{79+2*i}]")
    sWV, sX, sU, sH, sJ = "s3", "s4", "s5", "s6", "s7"
    X, WS, SA, SB, SC, SD = "s[8:11]", "s[12:15]", "s[16:19]", "s[20:23]", "s[24:27]", "s[28:31]"
    sTag, sE, sSpin, sT = "s36", "s37", "s38", "s39"
    sP0, sP1, sP2, sU0, sU1 = "s56", "s57", "s58", "s59", "s60"
    MASK0 = 62
    vL, vC, vG = "v1", "v2", "v3"
    selE = [f"v{32+r}" for r in range(4)]; selO = [f"v{36+r}" for r in range(4)]

    def srd_consts(base, nbytes):
        a(f"s_mov_b32 s{base+2}, {nbytes}"); a(f"s_mov_b32 s{base+3}, 0x00020000")
    def make_sels(t0, t1, t2, t3):
        a(f"v_and_b32 {t0}, 1, {vC}")
        a(f"v_lshlrev_b32 {t0}, 4, {t0}")
        a(f"v_mov_b32 {t1}, 0x0c0c0100"); a(f"v_mov_b32 {t2}, 0x0c0c0302"); a(f"v_mov_b32 {t3}, 0x0c0c0c0c")
        a(f"v_alignbit_b32 {t1}, {t1}, {t1}, {t0}")
        a(f"v_alignbit_b32 {t2}, {t2}, {t2}, {t0}")
        a(f"v_bfe_u32 {t0}, {vC}, 1, 2")
        for r in range(4):
            a(f"v_cmp_eq_u32 vcc, {r}, {t0}")
            a(f"v_cndmask_b32 {selE[r]}, {t3}, {t1}, vcc")
            a(f"v_cndmask_b32 {selO[r]}, {t3}, {t2}, vcc")
        a(f"s_mov_b32 {sP0}, 0x07060501"); a(f"s_mov_b32 {sP1}, 0x07060502"); a(f"s_mov_b32 {sP2}, 0x07060503")
        a(f"s_mov_b32 {sU0}, 0x0c04000c"); a(f"s_mov_b32 {sU1}, 0x04020100")
    def diag(dst, src, t):
        s = selO if (t & 1) else selE
        for r in range(4): a(f"v_perm_b32 v{dst+r}, v{src}, v{src}, {s[r]}")
    def pack24(dst, src):
        a(f"v_perm_b32 v{dst}, v{src}, v{src+3}, {sP0}")
        a(f"v_perm_b32 v{dst+1}, v{src+1}, v{src+3}, {sP1}")
        a(f"v_perm_b32 v{dst+2}, v{src+2}, v{src+3}, {sP2}")
    def unpack24(g):
        a(f"v_perm_b32 v{g+3}, v{g+1}, v{g}, {sU0}")
        a(f"v_perm_b32 v{g+3}, v{g+2}, v{g+3}, {sU1}")
    def sum4(b):
        a(f"v_pk_add_f32 v[{b}:{b+1}], v[{b}:{b+1}], v[{b+4}:{b+5}]"); a(f"v_pk_add_f32 v[{b+2}:{b+3}], v[{b+2}:{b+3}], v[{b+6}:{b+7}]")
        a(f"v_pk_add_f32 v[{b+8}:{b+9}], v[{b+8}:{b+9}], v[{b+12}:{b+13}]"); a(f"v_pk_add_f32 v[{b+10}:{b+11}], v[{b+10}:{b+11}], v[{b+14}:{b+15}]")
        a(f"v_pk_add_f32 v[{b}:{b+1}], v[{b}:{b+1}], v[{b+8}:{b+9}]"); a(f"v_pk_add_f32 v[{b+2}:{b+3}], v[{b+2}:{b+3}], v[{b+10}:{b+11}]")
    npoll = [0]
    def poll(loads, dual=None, first_issued=False, between=None):
        npoll[0] += 1
        L = f"L_poll{npoll[0]}"
        n = len(loads)
        def ld(i, so=None):
            d, vo, s, imm = loads[i]
            a(f"buffer_load_dwordx4 v[{d}:{d+3}], {vo}, {WS}, {so or s} offen offset:{imm} sc1")
        for i in range(n): ld(i)
        if between: between()
        a(f"s_branch {L}c")
        a.label(L)
        if dual:
            a(f"s_and_b32 {sT}, {sSpin}, {opts.get('safe_mask', 31)}")
            a(f"s_cselect_b32 {sT}, 0, {SAFE}")
            a(f"s_add_u32 {sT}, {sT}, {dual}")
        for i in range(n):
            a(f"s_mov_b64 exec, s[{MASK0+2*i}:{MASK0+2*i+1}]")
            ld(i, sT if dual else None)
        a("s_mov_b64 exec, -1")
        a(f"s_sub_u32 {sSpin}, {sSpin}, 1")
        a("s_cbranch_scc1 L_end")
        a.label(L + "c")
        a("s_waitcnt vmcnt(0)")
        for i in range(n):
            a(f"v_cmp_ne_u32 s[{MASK0+2*i}:{MASK0+2*i+1}], {sTag}, v{loads[i][0]+3}")
        if n == 1:
            a(f"s_cmp_lg_u64 s[{MASK0}:{MASK0+1}], 0")
        else:
            a(f"s_or_b64 vcc, s[{MASK0}:{MASK0+1}], s[{MASK0+2}:{MASK0+3}]")
            for i in range(2, n): a(f"s_or_b64 vcc, vcc, s[{MASK0+2*i}:{MASK0+2*i+1}]")
        a(f"s_cbranch_scc1 {L}")
    def publish_dual(data, voff, soff):
        a(f"buffer_store_dwordx4 v[{data}:{data+3}], {voff}, {WS}, {soff} offen")
        a(f"s_add_u32 {sT}, {soff}, {SAFE}")
        a(f"buffer_store_dwordx4 v[{data}:{data+3}], {voff}, {WS}, {sT} offen sc1")
    def xg_reduce_multi(op, vs, ts, swaps=("v_permlane16_swap_b32", "v_permlane32_swap_b32")):
        for sw in swaps:
            for v, t in zip(vs, ts): a(f"v_mov_b32 {t}, {v}")
            for v, t in zip(vs, ts): a(f"{sw} {v}, {t}")
            for v, t in zip(vs, ts): a(f"{op} {v}, {v}, {t}")
    def row_reduce(op, v, rors=(1, 2, 4, 8)):
        for r in rors: a(f"{op}_dpp {v}, {v}, {v} row_ror:{r} row_mask:0xf bank_mask:0xf")

    a(".amdgcn_target \"amdgcn-amd-amdhsa--gfx950\"")
    a(".text"); a(f".globl {K}"); a(".p2align 8"); a(f".type {K},@function"); a.label(K)
    stamp(0)
    a("s_load_dwordx2 s[8:9], s[0:1], 0")
    a("s_load_dwordx2 s[12:13], s[0:1], 104")
    a("s_cmp_ge_u32 s2, 128")
    a("s_cbranch_scc1 L_A_args")
    a("s_load_dwordx2 s[16:17], s[0:1], 16")
    a("s_load_dwordx2 s[20:21], s[0:1], 24")
    a("s_load_dwordx2 s[24:25], s[0:1], 32")
    a("s_load_dwordx2 s[28:29], s[0:1], 88")
    a("s_load_dwordx4 s[32:35], s[0:1], 56")
    srd_consts(16, 640*8192); srd_consts(20, 512*8192); srd_consts(24, 512*8192); srd_consts(28, 2560)
    a("s_branch L_common")
    a.label("L_A_args")
    a("s_cmp_ge_u32 s2, 256")
    a("s_cbranch_scc1 L_end")
    a("s_load_dwordx2 s[16:17], s[0:1], 8")
    a("s_load_dwordx2 s[20:21], s[0:1], 40")
    a("s_load_dwordx2 s[24:25], s[0:1], 72")
    a("s_load_dwordx2 s[28:29], s[0:1], 80")
    srd_consts(16, 2*4096*1024); srd_consts(20, 4096*1280); srd_consts(24, 1728*1280); srd_consts(28, 1280)
    a.label("L_common")
    srd_consts(8, 2560); srd_consts(12, 0x10000000)
    a("v_lshrrev_b32 v4, 6, v0")
    a(f"v_and_b32 {vL}, 63, v0")
    a(f"v_readfirstlane_b32 {sWV}, v4")
    a(f"v_and_b32 {vC}, 15, v0")
    a(f"v_bfe_u32 {vG}, v0, 4, 2")
    a(f"s_and_b32 {sX}, s2, 7")
    a(f"s_bfe_u32 {sU}, s2, 0x40003")
    a(f"s_and_b32 {sH}, {sU}, 3")
    a(f"s_lshl_b32 s40, {sX}, 2")
    a(f"s_add_u32 {sH}, {sH}, s40")
    a(f"s_lshr_b32 {sJ}, {sU}, 2")
    a(f"v_lshlrev_b32 v30, 4, {vL}")
    a(f"s_mov_b32 {sSpin}, 0x5ffff")
    a("s_cmp_ge_u32 s2, 128")
    a("s_cbranch_scc1 L_A")


    XF = 40; AP = 64; WQ = 104; PL = 144; AF = 176; UK = 224
    a(f"s_lshl_b32 s40, {sJ}, 2"); a(f"s_add_u32 s40, s40, {sWV}")
    a(f"v_lshrrev_b32 v4, 3, {vC}")
    a("v_mul_u32_u24 v4, 1280, v4")
    a(f"v_lshl_add_u32 v5, {vG}, 2, v4")
    a(f"v_lshl_add_u32 v4, {vG}, 4, v4")
    a("s_mul_i32 s41, s40, 80")
    a(f"v_lshlrev_b32 v6, 16, {vG}"); a(f"v_lshl_add_u32 v6, {vC}, 4, v6")
    a(f"v_lshlrev_b32 v7, 14, {vG}"); a(f"v_lshl_add_u32 v7, {vC}, 4, v7")
    a(f"s_mul_i32 s43, s40, {40*8192}")
    a(f"s_lshl_b32 s42, {sH}, 8")
    a("s_add_u32 s43, s43, s42")
    a(f"v_lshrrev_b32 v8, 2, {vC}")
    a(f"v_and_b32 v9, 3, {vC}")
    a("v_lshl_add_u32 v8, v8, 3, v9")
    a("v_lshlrev_b32 v8, 13, v8")
    a(f"v_lshl_add_u32 v8, {vG}, 4, v8")
    a("s_lshl_b32 s44, s40, 18"); a("s_add_u32 s44, s44, s42")
    a(f"s_add_u32 s45, s44, {4*8192}")
    a("s_waitcnt lgkmcnt(0)")
    a(f"s_load_dword {sE}, s[12:13], {WS_EPOCH}")
    a(f"buffer_load_dwordx4 v[{XF}:{XF+3}], v4, {X}, s41 offen")
    a(f"buffer_load_dword v{XF+4}, v5, {X}, s41 offen offset:64")
    for t in range(10):
        a(f"buffer_load_dwordx4 v[{WQ+4*t}:{WQ+4*t+3}], {'v6' if t < 8 else 'v7'}, {SA}, s43 offen nt")
        if t < 9: a(f"s_add_u32 s43, s43, {8192 if t != 7 else 25*8192}")
    if opts.get('qbar', 1): a("s_barrier")
    for tau in range(2):
        for t in range(4):
            a(f"buffer_load_dwordx4 v[{UK+16*tau+4*t}:{UK+16*tau+4*t+3}], v8, {SB}, s{44+tau} offen offset:{64*t} nt")
    make_sels("v12", "v13", "v14", "v15")
    a(f"s_lshl_b32 s46, {sWV}, 10"); a(f"s_add_u32 s46, s46, {L_RED}")
    a("v_add_u32 v24, s46, v30")
    a(f"v_add_u32 v25, {L_RED}, v30")
    a(f"v_lshrrev_b32 v26, 1, {vG}"); a("v_lshlrev_b32 v26, 8, v26")
    a(f"v_lshl_add_u32 v26, {vC}, 4, v26")
    a(f"v_and_b32 v27, 1, {vG}"); a("v_lshl_add_u32 v26, v27, 3, v26"); a(f"v_add_u32 v26, {L_QW}, v26")
    a(f"v_and_b32 v27, 1, {vC}"); a("v_lshlrev_b32 v28, 8, v27"); a(f"v_lshl_add_u32 v28, {vG}, 4, v28"); a(f"v_add_u32 v28, {L_QW}, v28")
    a(f"v_lshrrev_b32 v29, 2, {vC}"); a("v_lshlrev_b32 v29, 17, v29"); a("v_lshl_add_u32 v29, v27, 16, v29")
    a(f"v_bfe_u32 v31, {vC}, 1, 1"); a("v_lshl_add_u32 v29, v31, 6, v29"); a(f"v_lshl_add_u32 v29, {vG}, 4, v29")
    a("v_cmp_ne_u32 s[52:53], 0, v31")
    a(f"s_lshl_b32 s47, {sH}, 4"); a("s_add_u32 s47, s47, s40"); a("s_lshl_b32 s47, s47, 7"); a(f"s_add_u32 s47, s47, {WS_H2}")
    a(f"s_lshl_b32 s48, {sH}, 12"); a(f"s_add_u32 s48, s48, {WS_H1}")
    a(f"s_lshl_b32 s49, {sJ}, 10"); a("s_add_u32 s49, s49, s48")
    a(f"s_mov_b32 s50, {f32(SCALE)}")
    a("s_waitcnt lgkmcnt(0)")
    a(f"s_add_u32 {sE}, {sE}, 1")
    a(f"s_and_b32 {sTag}, {sE}, 0xbfffbfff")
    a(f"v_mov_b32 v50, {sTag}"); a(f"v_mov_b32 v51, {sTag}")
    a("s_waitcnt vmcnt(18)")
    for t in range(10): diag(AP + 4*t, XF + t//2, t)
    for t in range(10):
        if t % 2 == 0: a(f"s_waitcnt vmcnt({16 - t})")
        c = "0" if t == 0 else "v[8:11]"
        a(f"{MF} v[8:11], v[{AP+4*t}:{AP+4*t+3}], v[{WQ+4*t}:{WQ+4*t+3}], {c}")
    stamp(1)
    a(f"s_cmp_eq_u32 {sWV}, 0")
    a("s_cbranch_scc1 L_Q_w0a")
    a("ds_write_b128 v24, v[8:11]")
    a("s_waitcnt lgkmcnt(0)")
    a("s_barrier")
    a("s_branch L_Q_qbar")
    a.label("L_Q_w0a")
    a("s_barrier")
    for i in range(1, 4): a(f"ds_read_b128 v[{8+4*i}:{11+4*i}], v25 offset:{1024*i}")
    a("s_waitcnt lgkmcnt(0)")
    a("s_nop 3")
    sum4(8)
    pack24(48, 8)
    publish_dual(48, "v30", "s49")
    stamp(2)
    poll([(8+4*i, "v30", "s48", 1024*i) for i in range(4)], dual="s48")
    stamp(3)
    for i in range(4): unpack24(8 + 4*i)
    sum4(8)
    a("v_cvt_pk_bf16_f32 v8, v8, v9"); a("v_cvt_pk_bf16_f32 v9, v10, v11")
    a("ds_write_b64 v26, v[8:9]")
    a(f"v_mov_b32 v50, {sTag}")
    a("s_waitcnt lgkmcnt(0)")
    a.label("L_Q_qbar")
    a("s_waitcnt vmcnt(0)")
    a("s_barrier")
    for t in range(4): a(f"ds_read_b128 v[{8+4*t}:{11+4*t}], v28 offset:{64*t}")
    for t in range(4):
        a(f"s_waitcnt lgkmcnt({3-t})")
        for tau in range(2):
            c = "0" if t == 0 else f"v[{56+4*tau}:{59+4*tau}]"
            a(f"{MF} v[{56+4*tau}:{59+4*tau}], v[{UK+16*tau+4*t}:{UK+16*tau+4*t+3}], v[{8+4*t}:{11+4*t}], {c}")
    for r in range(4): a(f"v_cndmask_b32 v{56+r}, v{56+r}, v{60+r}, s[52:53]")
    for r in range(4): a(f"v_mul_f32 v{56+r}, s50, v{56+r}")
    a("v_cvt_pk_bf16_f32 v48, v56, v57"); a("v_cvt_pk_bf16_f32 v49, v58, v59")
    a(f"buffer_store_dwordx4 v[48:51], v29, {WS}, s47 offen sc1")
    stamp(4)
    if opts.get('noP2', 0): a("s_branch L_fin")
    a(f"s_cmp_ge_u32 {sH}, 27")
    a("s_cbranch_scc1 L_Q_nof1")
    a(f"v_cmp_gt_u32 vcc, 8, {vC}")
    a("v_mov_b32 v8, s34"); a("v_mov_b32 v9, s35"); a("v_mov_b32 v10, s32"); a("v_mov_b32 v11, s33")
    a("v_cndmask_b32 v8, v8, v10, vcc"); a("v_cndmask_b32 v9, v9, v11, vcc")
    a(f"v_and_b32 v12, 7, {vC}"); a("v_lshlrev_b32 v12, 4, v12")
    a(f"s_mul_i32 s44, s40, {40*3456}"); a(f"s_lshl_b32 s45, {sH}, 7"); a("s_add_u32 s44, s44, s45")
    a("s_add_u32 s44, s44, 3456")
    a("v_add_u32 v12, s44, v12")
    a(f"v_mad_u32_u24 v10, {vG}, s51, v12") if False else None
    a(f"v_mul_u32_u24 v10, {8*3456}, {vG}"); a("v_add_u32 v10, v10, v12"); a("v_mov_b32 v11, 0")
    a(f"v_mul_u32_u24 v14, {2*3456}, {vG}"); a("v_add_u32 v14, v14, v12"); a(f"v_add_u32 v14, {32*3456}, v14"); a("v_mov_b32 v15, 0")
    a("v_lshl_add_u64 v[10:11], v[8:9], 0, v[10:11]")
    a("v_lshl_add_u64 v[14:15], v[8:9], 0, v[14:15]")
    a(f"s_mov_b32 s44, {2*3456}"); a("s_mov_b32 s45, 0")
    for t in range(10):
        ad = "v[10:11]" if t < 8 else "v[14:15]"
        a(f"global_load_dwordx4 v[{WQ+4*t}:{WQ+4*t+3}], {ad}, off offset:{-3456 if t % 2 == 0 else 0} nt")
        if t % 2 == 1 and t < 7: a("v_lshl_add_u64 v[10:11], v[10:11], 0, s[44:45]")
    a.label("L_Q_nof1")
    a(f"v_lshlrev_b32 v8, 13, {vG}"); a(f"v_lshl_add_u32 v8, {vC}, 4, v8")
    a("s_lshl_b32 s44, s40, 18"); a("s_add_u32 s44, s44, s42")
    a(f"s_mul_i32 s45, {sWV}, {8*UV_BS}")
    for i in range(8):
        a("s_mov_b32 m0, s45")
        a(f"s_add_u32 s45, s45, {UV_BS}")
        a(f"buffer_load_dwordx4 v8, {SC}, s44 offen nt lds")
        a(f"s_add_u32 s44, s44, {4*8192}")
    a(f"v_bfe_u32 v45, {vC}, 1, 2"); a("v_lshlrev_b32 v45, 10, v45")
    a(f"v_lshrrev_b32 v13, 3, {vC}"); a("v_lshl_add_u32 v45, v13, 7, v45")
    a("v_lshl_add_u32 v45, v27, 6, v45")
    a(f"v_lshl_add_u32 v45, {vG}, 4, v45")
    a(f"s_lshl_b32 s41, {sH}, 12"); a(f"s_lshl_b32 s43, {sJ}, 8"); a("s_add_u32 s41, s41, s43"); a(f"s_add_u32 s41, s41, {WS_HF}")
    a(f"v_mul_u32_u24 v46, {4*UV_BS}, {vG}")
    a(f"v_lshrrev_b32 v9, 2, {vC}"); a("v_lshl_add_u32 v46, v9, 8, v46")
    a(f"v_and_b32 v9, 3, {vC}"); a("v_lshl_add_u32 v46, v9, 3, v46")
    a(f"s_lshl_b32 s46, {sWV}, 6"); a("v_add_u32 v46, s46, v46")
    a(f"v_mul_u32_u24 v47, {8*768}, {vG}"); a(f"v_lshl_add_u32 v47, {vC}, 4, v47")
    a(f"s_lshl_b32 s48, {sH}, 2"); a(f"s_add_u32 s48, s48, {sJ}"); a(f"s_mul_i32 s48, s48, {32*768}"); a(f"s_add_u32 s48, s48, {WS_H3}")
    a(f"s_lshl_b32 s47, {sWV}, 8"); a("s_add_u32 s46, s48, s47")
    a(f"s_add_u32 s47, s46, {4*768}")
    a(f"v_and_b32 v26, 31, {vL}"); a("v_mul_u32_u24 v26, 768, v26"); a(f"v_lshrrev_b32 v9, 5, {vL}"); a("v_mul_u32_u24 v9, 384, v9"); a("v_add_u32 v26, v26, v9")
    a(f"v_lshlrev_b32 v28, 1, {vL}"); a(f"v_add_u32 v28, {L_FW}, v28")
    a("v_lshlrev_b32 v29, 6, v13"); a(f"v_lshl_add_u32 v29, {vG}, 4, v29"); a(f"v_add_u32 v29, {L_FW}, v29")
    a(f"s_lshl_b32 s50, {sWV}, 4"); a(f"v_add_u32 v9, s50, {vC}")
    a("v_cmp_le_u32 vcc, 24, v9")
    a("v_cndmask_b32 v10, 0, 1, vcc")
    a("v_mul_u32_u24 v11, 24, v10"); a("v_sub_u32 v9, v9, v11")
    a("v_mul_u32_u24 v42, 320, v10")
    a("v_and_b32 v11, 3, v9"); a("v_mul_u32_u24 v11, 80, v11"); a("v_add_u32 v42, v42, v11")
    a("v_lshrrev_b32 v11, 2, v9"); a("v_cmp_eq_u32 s[32:33], 5, v11")
    a("v_mul_u32_u24 v11, 12, v11"); a("v_add_u32 v42, v42, v11")
    a(f"v_and_b32 v11, 1, {vG}"); a("v_lshl_add_u32 v42, v11, 3, v42"); a(f"v_add_u32 v42, {L_LAT}, v42")
    a(f"v_lshrrev_b32 v9, 1, {vG}")
    a("v_cmp_eq_u32 s[54:55], v9, v10")
    a("v_cmp_eq_u32 vcc, 0, v11")
    a("s_and_b64 s[34:35], s[54:55], vcc")
    a("v_mul_u32_u24 v43, 320, v27"); a(f"v_lshl_add_u32 v43, {vG}, 4, v43"); a(f"v_add_u32 v43, {L_LAT}, v43")
    a("v_lshlrev_b32 v44, 7, v31"); a("v_lshl_add_u32 v44, v27, 6, v44"); a(f"v_lshl_add_u32 v44, {vG}, 4, v44")
    a(f"s_lshl_b32 s50, {sH}, 2"); a(f"s_add_u32 s50, s50, {sWV}"); a("s_lshl_b32 s50, s50, 2"); a(f"s_add_u32 s50, s50, {sJ}")
    a("s_lshl_b32 s50, s50, 8"); a(f"s_add_u32 s50, s50, {WS_H4}")
    a(f"s_cmp_ge_u32 {sH}, 27")
    a("s_cbranch_scc1 L_Q_uvbar")
    for t in range(10):
        if t % 2 == 0: a(f"s_waitcnt vmcnt({16 - t})")
        c = "0" if t == 0 else "v[8:11]"
        a(f"{MF} v[8:11], v[{AP+4*t}:{AP+4*t+3}], v[{WQ+4*t}:{WQ+4*t+3}], {c}")
    a(f"s_cmp_eq_u32 {sWV}, 0")
    a("s_cbranch_scc1 L_Q_w0b")
    a("ds_write_b128 v24, v[8:11]")
    a("s_waitcnt lgkmcnt(0)")
    a("s_barrier")
    a("s_branch L_Q_uvbar")
    a.label("L_Q_w0b")
    a("s_barrier")
    for i in range(1, 4): a(f"ds_read_b128 v[{8+4*i}:{11+4*i}], v25 offset:{1024*i}")
    a("s_waitcnt lgkmcnt(0)")
    a("s_nop 3")
    sum4(8)
    pack24(48, 8)
    publish_dual(48, "v45", "s41")
    a.label("L_Q_uvbar")
    a("s_waitcnt vmcnt(0)")
    a("s_barrier")
    stamp(5)
    if opts.get('noA', 0) or opts.get('stopS3', 0): a("s_branch L_fin")
    for tau in range(2):
        for t in range(4):
            for hh in range(2):
                off = (16*(t >> 1) + (t & 1) + 2*hh) * UV_BS + tau*32
                r = UK + 16*tau + 4*t + 2*hh
                a(f"ds_read_b64_tr_b16 v[{r}:{r+1}], v46 offset:{off}")
    a(f"s_cmp_lg_u32 {sWV}, 3")
    a("s_cbranch_scc1 L_Q_h3w")
    poll([(12, "v26", "s48", 320)])
    a("s_barrier")
    stamp(6)
    a("v_mov_b32 v16, v13")
    row_reduce("v_max_f32", "v16")
    xg_reduce_multi("v_max_f32", ["v16"], ["v17"], swaps=("v_permlane16_swap_b32",))
    a("v_sub_f32 v16, v13, v16"); a("v_exp_f32 v16, v16")
    a("v_mul_f32 v18, v16, v14")
    row_reduce("v_add_f32", "v18")
    xg_reduce_multi("v_add_f32", ["v18"], ["v17"], swaps=("v_permlane16_swap_b32",))
    a("v_rcp_f32 v18, v18")
    a("v_mul_f32 v16, v16, v18")
    a("v_cvt_pk_bf16_f32 v16, v16, v16")
    a("ds_write_b16 v28, v16")
    a("s_waitcnt lgkmcnt(0)")
    a("s_barrier")
    a("s_branch L_Q_b2")
    a.label("L_Q_h3w")
    a("s_barrier")
    def mid():
        a("s_barrier")
        a("ds_read_b128 v[16:19], v29")
        a("s_waitcnt lgkmcnt(0)")
        for t in range(8): diag(AF + 4*t, 16 + t//2, t)
    poll([(PL+4*t, "v47", f"s{46 + t//4}", (t % 4)*768) for t in range(8)], between=mid)
    stamp(7)
    a("s_mov_b64 exec, s[32:33]")
    for t in range(8):
        a(f"v_mov_b32 v{PL+4*t+1}, 0"); a(f"v_mov_b32 v{PL+4*t+2}, 0")
    a("s_mov_b64 exec, -1")
    for t in range(8):
        c = "0" if t == 0 else "v[16:19]"
        a(f"{MF} v[16:19], v[{AF+4*t}:{AF+4*t+3}], v[{PL+4*t}:{PL+4*t+3}], {c}")
    a("v_cvt_pk_bf16_f32 v20, v16, v17"); a("v_cvt_pk_bf16_f32 v21, v18, v19")
    a("s_mov_b64 exec, s[54:55]")
    a("ds_write_b32 v42, v20")
    a("s_mov_b64 exec, s[34:35]")
    a("ds_write_b32 v42, v21 offset:4")
    a("s_mov_b64 exec, -1")
    a.label("L_Q_b2")
    a("s_waitcnt lgkmcnt(0)")
    a("s_barrier")
    for t in range(4): a(f"ds_read_b128 v[{8+4*t}:{11+4*t}], v43 offset:{80*t}")
    for t in range(4):
        a(f"s_waitcnt lgkmcnt({3-t})")
        for tau in range(2):
            c = "0" if t == 0 else f"v[{56+4*tau}:{59+4*tau}]"
            a(f"{MF} v[{56+4*tau}:{59+4*tau}], v[{UK+16*tau+4*t}:{UK+16*tau+4*t+3}], v[{8+4*t}:{11+4*t}], {c}")
    for r in range(4): a(f"v_cndmask_b32 v{56+r}, v{56+r}, v{60+r}, s[52:53]")
    pack24(48, 56)
    a("s_mov_b64 exec, 0x000f000f000f000f") if False else None
    a("s_mov_b32 exec_lo, 0x000f000f"); a("s_mov_b32 exec_hi, 0x000f000f")
    publish_dual(48, "v44", "s50")
    a("s_mov_b64 exec, -1")
    stamp(8)
    a("s_cmp_ge_u32 s2, 40")
    a("s_cbranch_scc1 L_fin")
    a("v_lshlrev_b32 v30, 4, v0")
    a(f"s_lshl_b32 s46, s2, 14"); a(f"s_add_u32 s46, s46, {WS_H5}")
    a(f"s_add_u32 s47, s46, 4096"); a(f"s_add_u32 s48, s46, 8192"); a(f"s_add_u32 s49, s46, 12288")
    a(f"v_and_b32 v24, 7, {vL}")
    a(f"s_lshl_b32 s50, {sWV}, 7"); a(f"s_add_u32 s50, s50, {L_FIN}")
    a("v_lshl_add_u32 v25, v24, 4, s50")
    a(f"v_lshlrev_b32 v26, 4, v24"); a(f"v_add_u32 v26, {L_FIN}, v26")
    a("s_lshr_b32 s51, s2, 3")
    a("s_bfe_u32 s54, s2, 0x20001")
    a("s_and_b32 s55, s2, 1")
    a("s_lshr_b32 s40, s54, 1"); a("s_mul_i32 s40, s40, 1280")
    a("s_lshl_b32 s51, s51, 8"); a("s_add_u32 s40, s40, s51")
    a("s_lshl_b32 s55, s55, 7"); a("s_add_u32 s40, s40, s55")
    a("s_and_b32 s54, s54, 1"); a("s_lshl_b32 s54, s54, 3"); a("s_add_u32 s40, s40, s54")
    a("v_lshlrev_b32 v27, 4, v24")
    poll([(8+4*i, "v30", f"s{46+i}", 0) for i in range(4)])
    stamp(9)
    for i in range(4): unpack24(8 + 4*i)
    sum4(8)
    for r in range(4): a(f"v_add_f32_dpp v{8+r}, v{8+r}, v{8+r} row_ror:8 row_mask:0xf bank_mask:0xf")
    xg_reduce_multi("v_add_f32", ["v8", "v9", "v10", "v11"], ["v12", "v13", "v14", "v15"])
    a("s_mov_b64 exec, 0xff")
    a("ds_write_b128 v25, v[8:11]")
    a("s_waitcnt lgkmcnt(0)")
    a("s_barrier")
    a(f"s_cmp_lg_u32 {sWV}, 0")
    a("s_cbranch_scc1 L_fin")
    for i in range(1, 4): a(f"ds_read_b128 v[{8+4*i}:{11+4*i}], v26 offset:{128*i}")
    a("s_waitcnt lgkmcnt(0)")
    sum4(8)
    a("v_cvt_pk_bf16_f32 v8, v8, v9"); a("v_cvt_pk_bf16_f32 v9, v10, v11")
    a(f"buffer_store_dwordx2 v[8:9], v27, {SD}, s40 offen")
    a("s_cmp_lg_u32 s2, 0")
    a("s_cbranch_scc1 L_fin")
    a("s_mov_b64 exec, 1")
    a(f"v_mov_b32 v10, {sE}"); a("v_mov_b32 v11, 0")
    a(f"buffer_store_dword v10, v11, {WS}, 0 offen offset:{WS_EPOCH} sc1")
    a("s_branch L_fin")

    a.label("L_A")
    if opts.get('noA', 0): a("s_waitcnt lgkmcnt(0)"); a("s_branch L_fin")
    sB_, sS_, sHG = "s40", "s41", "s42"
    a(f"s_lshr_b32 {sB_}, {sX}, 2")
    a(f"s_and_b32 {sS_}, {sX}, 3"); a(f"s_lshl_b32 {sS_}, {sS_}, 3"); a(f"s_and_b32 s43, {sU}, 7"); a(f"s_add_u32 {sS_}, {sS_}, s43")
    a(f"s_lshr_b32 {sHG}, {sU}, 3")
    a(f"s_lshl_b32 s44, {sB_}, 5"); a(f"s_add_u32 s44, s44, {sS_}"); a("s_lshl_b32 s44, s44, 2"); a(f"s_add_u32 s44, s44, {sWV}"); a("s_lshl_b32 s44, s44, 15")
    a(f"s_mul_i32 s45, {sWV}, {32*CKV_STRIDE}")
    a(f"s_add_u32 s46, s45, {32*CKV_STRIDE}")
    a(f"v_lshlrev_b32 v4, 2, {vL}")
    a(f"s_cmp_lg_u32 {sWV}, 2")
    a("s_cbranch_scc1 L_A_nopf")
    a("s_getpc_b64 s[48:49]")
    a.label("L_pc1")
    a(f"s_sub_u32 s48, s48, L_pc1-{K}")
    a("s_subb_u32 s49, s49, 0")
    a(f"s_mul_i32 s43, s43, {NPF*128}")
    a(f"v_lshl_add_u32 v10, {vL}, 7, s43")
    a(f"s_mov_b64 exec, {(1<<NPF)-1}")
    a("global_load_dword v11, v10, s[48:49]")
    a("s_mov_b64 exec, -1")
    a.label("L_A_nopf")
    a("s_waitcnt lgkmcnt(0)")
    a(f"s_load_dword {sE}, s[12:13], {WS_EPOCH}")
    a(f"s_cmp_lg_u32 {sWV}, 3")
    a("s_cbranch_scc1 L_A_dma")
    a(f"buffer_load_dwordx4 v[40:43], v30, {X}, 0 offen"); a(f"buffer_load_dword v44, v4, {X}, 0 offen offset:1024")
    a(f"buffer_load_dwordx4 v[48:51], v30, {X}, 0 offen offset:1280"); a(f"buffer_load_dword v52, v4, {X}, 0 offen offset:2304")
    a(f"buffer_load_dwordx4 v[56:59], v30, {SD}, 0 offen"); a(f"buffer_load_dword v60, v4, {SD}, 0 offen offset:1024")
    a.label("L_A_dma")
    a("s_mov_b32 m0, s45")
    a(f"s_add_u32 s45, s45, {CKV_STRIDE}")
    a(f"buffer_load_dwordx4 v30, {SA}, s44 offen nt lds")
    a("s_add_u32 s44, s44, 1024")
    a("s_cmp_lt_u32 s45, s46")
    a("s_cbranch_scc1 L_A_dma")
    make_sels("v8", "v9", "v10", "v11")
    a("s_waitcnt lgkmcnt(0)")
    a(f"s_add_u32 {sE}, {sE}, 1")
    a(f"s_and_b32 {sTag}, {sE}, 0xbfffbfff")
    a(f"s_cmp_lg_u32 {sWV}, 3")
    a("s_cbranch_scc1 L_A_nogate")
    a("s_waitcnt vmcnt(32)")
    a("v_mov_b32 v8, 0"); a("v_mov_b32 v9, 0")
    for i in range(5):
        a(f"v_dot2_f32_bf16 v8, v{40+i}, v{56+i}, v8")
        a(f"v_dot2_f32_bf16 v9, v{48+i}, v{56+i}, v9")
    a("s_nop 2")
    for r in (1, 2, 4, 8):
        a(f"v_add_f32_dpp v8, v8, v8 row_ror:{r} row_mask:0xf bank_mask:0xf")
        a(f"v_add_f32_dpp v9, v9, v9 row_ror:{r} row_mask:0xf bank_mask:0xf")
    xg_reduce_multi("v_add_f32", ["v8", "v9"], ["v10", "v11"])
    a(f"s_mov_b32 s47, {f32(-math.log2(math.e))}")
    a("v_mul_f32 v8, s47, v8"); a("v_mul_f32 v9, s47, v9")
    a("v_exp_f32 v8, v8"); a("v_exp_f32 v9, v9")
    a("v_add_f32 v8, 1.0, v8"); a("v_add_f32 v9, 1.0, v9")
    a("v_rcp_f32 v8, v8"); a("v_rcp_f32 v9, v9")
    a("v_sub_f32 v10, 1.0, v8"); a("v_sub_f32 v11, 1.0, v9")
    a(f"v_mov_b32 v12, {L_G}")
    a("ds_write_b128 v12, v[8:11]")
    a.label("L_A_nogate")
    a(f"v_mul_u32_u24 v8, {CKV_STRIDE}, {vC}"); a(f"v_lshl_add_u32 v8, {vG}, 4, v8")
    a(f"s_mul_i32 s45, {sWV}, {32*CKV_STRIDE}"); a("v_add_u32 v8, s45, v8")
    a(f"s_and_b32 s44, {sX}, 3"); a("s_lshl_b32 s44, s44, 17"); a(f"s_lshl_b32 s45, {sB_}, 16"); a("s_add_u32 s44, s44, s45")
    a(f"s_lshl_b32 s45, {sHG}, 15"); a("s_add_u32 s44, s44, s45"); a(f"s_lshl_b32 s45, {sWV}, 13"); a("s_add_u32 s44, s44, s45")
    a(f"s_add_u32 s44, s44, {WS_H2}"); a("s_add_u32 s45, s44, 4096")
    a(f"v_lshrrev_b32 v4, 3, {vL}"); a(f"v_and_b32 v5, 3, {vL}"); a(f"v_bfe_u32 v6, {vL}, 2, 1")
    a("v_lshlrev_b32 v7, 10, v4"); a("v_lshl_add_u32 v7, v5, 8, v7"); a("v_lshl_add_u32 v7, v6, 3, v7"); a(f"v_add_u32 v7, {L_QA}, v7")
    a("v_and_b32 v4, 3, v4"); a("v_lshl_add_u32 v4, v4, 2, v5")
    a(f"s_lshl_b32 s46, {sWV}, 2"); a("v_xor_b32 v4, s46, v4")
    for hh in range(4):
        a(f"v_xor_b32 v5, {hh}, v4")
        a(f"v_lshl_add_u32 v{12+hh}, v5, 4, v7")
    a(f"v_xor_b32 v4, {vG}, {vC}"); a(f"v_lshlrev_b32 v5, 8, {vG}"); a(f"v_add_u32 v5, {L_QA}, v5")
    for k in range(4):
        a(f"v_xor_b32 v6, {4*k}, v4")
        a(f"v_lshl_add_u32 v{16+k}, v6, 4, v5")
    a(f"v_lshrrev_b32 v9, 2, {vC}"); a(f"v_lshl_add_u32 v9, {vG}, 2, v9"); a(f"v_mul_u32_u24 v20, {CKV_STRIDE}, v9")
    a(f"v_bfe_u32 v9, {vC}, 1, 1"); a("v_lshl_add_u32 v20, v9, 7, v20")
    a(f"v_and_b32 v9, 1, {vC}"); a("v_lshl_add_u32 v20, v9, 3, v20")
    a(f"s_lshl_b32 s46, {sWV}, 8"); a("v_add_u32 v20, s46, v20")
    a(f"v_add_u32 v21, {64*CKV_STRIDE}, v20")
    a(f"v_lshlrev_b32 v22, 4, {vC}"); a(f"v_add_u32 v22, {L_MAX}, v22")
    a(f"s_lshl_b32 s46, {sWV}, 2"); a("v_add_u32 v23, s46, v22")
    a(f"v_add_u32 v24, {L_P}, v30"); a(f"s_lshl_b32 s46, {sWV}, 10"); a("v_add_u32 v25, s46, v24")
    a(f"v_and_b32 v26, 7, {vC}"); a(f"v_mul_u32_u24 v26, {4*32*768}, v26"); a(f"v_lshrrev_b32 v9, 3, {vC}"); a("v_lshl_add_u32 v26, v9, 6, v26"); a(f"v_lshl_add_u32 v26, {vG}, 4, v26")
    a(f"s_lshl_b32 s46, {sHG}, 6"); a(f"s_add_u32 s46, s46, {sWV}"); a("s_lshl_b32 s46, s46, 5"); a(f"s_add_u32 s46, s46, {sS_}")
    a("s_mul_i32 s46, s46, 768"); a(f"s_mul_i32 s47, {sB_}, 384"); a("s_add_u32 s46, s46, s47"); a(f"s_add_u32 s46, s46, {WS_H3}")
    a(f"s_add_u32 s47, s46, {8*4*32*768}")
    a(f"v_mul_u32_u24 v27, {8*1280}, {vG}"); a(f"v_lshl_add_u32 v27, {vC}, 4, v27")
    a(f"v_mul_u32_u24 v29, {4*1280}, {vG}"); a(f"v_lshl_add_u32 v29, {vC}, 4, v29")
    a(f"s_lshl_b32 s32, {sH}, 2"); a(f"s_add_u32 s32, s32, {sJ}")
    a(f"s_mul_i32 s33, s32, {32*1280}"); a(f"s_lshl_b32 s34, {sWV}, 8"); a("s_add_u32 s33, s33, s34")
    a(f"s_mul_i32 s48, s32, {16*1280}"); a("s_add_u32 s48, s48, s34")
    a(f"s_add_u32 s49, s48, {2*1280}")
    OG = 192
    for i in range(6): a(f"v_mov_b32 v{OG+4*i+3}, {sTag}")
    a("s_waitcnt vmcnt(16)")
    for t in range(16): a(f"ds_read_b128 a[{4*t}:{4*t+3}], v8 offset:{64*t}")
    a("s_waitcnt vmcnt(0)")
    stamp(1)
    HG = 40
    def mid2():
        for t in range(16): a(f"ds_read_b128 a[{64+4*t}:{64+4*t+3}], v8 offset:{16*CKV_STRIDE + 64*t}")
    poll([(HG+4*i, "v30", f"s{44 + i//4}", (i % 4)*1024) for i in range(8)], between=mid2)
    stamp(2)
    for i in range(8):
        a(f"ds_write_b64 v{12 + i//2}, v[{HG+4*i}:{HG+4*i+1}] offset:{8192*(i%2)}")
    a("s_waitcnt lgkmcnt(0)")
    a("s_barrier")
    QF = 72; SACC = 136; PF = 144; OACC = 160
    WD, WO, WD2, WO2 = 216, 40, 0, 16
    def wd_loads(f, dst, extra):
        for t in range(4):
            a(f"buffer_load_dwordx4 {f}[{dst+4*t}:{dst+4*t+3}], v29, {SC}, s{48 + t//2} offen offset:{(t%2)*1280 + extra} nt")
    def wo_loads(f, dst, extra, ts):
        for t in ts:
            if t % 2 == 0: a(f"s_add_u32 s50, s33, {t*1280}")
            a(f"buffer_load_dwordx4 {f}[{dst+4*t}:{dst+4*t+3}], v27, {SB}, s50 offen offset:{(t%2)*1280 + extra} nt")
    for t in range(8): a(f"ds_read_b128 v[{QF+4*t}:{QF+4*t+3}], v{16 + (t & 3)} offset:{1024*t}")
    for t in range(16):
        if t + 8 < 16:
            a(f"ds_read_b128 v[{QF+4*(t+8)}:{QF+4*(t+8)+3}], v{16 + (t & 3)} offset:{1024*(t+8)}")
            a("s_waitcnt lgkmcnt(8)")
        else:
            a(f"s_waitcnt lgkmcnt({15-t})")
        for tau in range(2):
            c = "0" if t == 0 else f"v[{SACC+4*tau}:{SACC+4*tau+3}]"
            a(f"{MF} v[{SACC+4*tau}:{SACC+4*tau+3}], a[{64*tau+4*t}:{64*tau+4*t+3}], v[{QF+4*t}:{QF+4*t+3}], {c}")
        if opts.get('early_w', 1):
            if t == 9: wd_loads("v", WD, 0)
            if t == 12: wo_loads("v", WO, 0, [0, 1])
    def tr_reads(ns):
        for n in ns:
            for w in range(4):
                for hh in range(2):
                    base = "v20" if w < 2 else "v21"
                    off = (32*(w & 1) + 16*hh) * CKV_STRIDE + 16*n
                    r = 128 + 16*n + 4*w + 2*hh
                    a(f"ds_read_b64_tr_b16 a[{r}:{r+1}], {base} offset:{off}")
    stamp(3)
    tr_reads([0])
    S = SACC
    a(f"v_max3_f32 v4, v{S}, v{S+1}, v{S+2}"); a(f"v_max3_f32 v5, v{S+3}, v{S+4}, v{S+5}")
    a(f"v_max3_f32 v4, v4, v{S+6}, v{S+7}"); a("v_max_f32 v4, v4, v5")
    xg_reduce_multi("v_max_f32", ["v4"], ["v5"])
    a("ds_write_b32 v23, v4")
    a("s_waitcnt lgkmcnt(0)")
    a("s_barrier")
    a("ds_read_b128 v[4:7], v22")
    tr_reads([1])
    a("s_waitcnt lgkmcnt(8)")
    a("v_max3_f32 v4, v4, v5, v6"); a("v_max_f32 v28, v4, v7")
    for r in range(8): a(f"v_sub_f32 v{S+r}, v{S+r}, v28")
    for r in range(8): a(f"v_exp_f32 v{S+r}, v{S+r}")
    for r in range(4): a(f"v_cvt_pk_bf16_f32 v{4+r}, v{S+2*r}, v{S+2*r+1}")
    a("ds_write_b128 v25, v[4:7]")
    a(f"v_add_f32 v9, v{S}, v{S+1}"); a(f"v_add_f32 v10, v{S+2}, v{S+3}"); a(f"v_add_f32 v11, v{S+4}, v{S+5}"); a(f"v_add_f32 v12, v{S+6}, v{S+7}")
    a("v_add_f32 v9, v9, v10"); a("v_add_f32 v11, v11, v12"); a("v_add_f32 v9, v9, v11")
    xg_reduce_multi("v_add_f32", ["v9"], ["v10"])
    a(f"ds_write_b32 v23, v9 offset:{L_SUM - L_MAX}")
    a("s_waitcnt lgkmcnt(0)")
    a("s_barrier")
    stamp(4)
    for w in range(4): a(f"ds_read_b128 v[{PF+4*w}:{PF+4*w+3}], v24 offset:{1024*w}")
    a(f"ds_read_b128 v[4:7], v22 offset:{L_SUM - L_MAX}")
    def pk(nn):
        for half in range(2):
            p = 2*nn + half
            a(f"v_cvt_pk_bf16_f32 v{OG + 4*(p//3) + p%3}, v{OACC+4*nn+2*half}, v{OACC+4*nn+2*half+1}")
    def shuffle_store(l):
        g0 = OG + 8*l; g1 = g0 + 4
        for d in range(3): a(f"v_mov_b32 v{12+d}, v{g0+d}")
        for d in range(3): a(f"v_mov_b32_dpp v{g0+d}, v{g1+d} row_ror:8 row_mask:0xf bank_mask:0xc")
        for d in range(3): a(f"v_mov_b32_dpp v{g1+d}, v{12+d} row_ror:8 row_mask:0xf bank_mask:0x3")
        a(f"buffer_store_dwordx4 v[{g0}:{g0+3}], v26, {WS}, s46 offen offset:{128*l} sc1")
        a(f"buffer_store_dwordx4 v[{g1}:{g1+3}], v26, {WS}, s47 offen offset:{128*l} sc1")
    for n in range(8):
        if n + 2 < 8:
            tr_reads([n + 2])
            if n == 0: a("s_waitcnt lgkmcnt(8)")
            elif n >= 2: a("s_waitcnt lgkmcnt(15)")
        elif n == 6: a("s_waitcnt lgkmcnt(8)")
        else: a("s_waitcnt lgkmcnt(0)")
        for w in range(4):
            c = "0" if w == 0 else f"v[{OACC+4*n}:{OACC+4*n+3}]"
            a(f"{MF} v[{OACC+4*n}:{OACC+4*n+3}], a[{128+16*n+4*w}:{128+16*n+4*w+3}], v[{PF+4*w}:{PF+4*w+3}], {c}")
        if n == 1:
            a("v_add_f32 v4, v4, v5"); a("v_add_f32 v6, v6, v7"); a(f"v_add_f32 v{OG+22}, v4, v6"); a(f"v_mov_b32 v{OG+21}, v28")
        if n >= 2: pk(n - 2)
        if n == 4: shuffle_store(0)
        if n == 7: shuffle_store(1)
    pk(6); pk(7)
    shuffle_store(2)
    stamp(5)
    if opts.get('drain', 0):
        a("s_waitcnt vmcnt(0)"); stamp(9); a("s_barrier")
    if opts.get('stopS3', 0): a("s_branch L_fin")
    if not opts.get('early_w', 1):
        wd_loads("v", WD, 0); wo_loads("v", WO, 0, [0, 1])
    wo_loads("v", WO, 0, [2, 3, 4, 5, 6, 7])
    a(f"s_cmp_lg_u32 {sWV}, 0")
    a("s_cbranch_scc1 L_A_w0l")
    wd_loads("a", WD2, 1024)
    wo_loads("a", WO2, 1024, range(8))
    a.label("L_A_w0l")
    a(f"v_mov_b32 v14, {L_G}")
    a("ds_read_b128 v[16:19], v14")
    a(f"s_lshl_b32 s46, {sWV}, 8"); a(f"s_add_u32 s46, s46, {L_ACT}")
    a(f"v_bfe_u32 v4, {vL}, 1, 1")
    a(f"v_bfe_u32 v5, {vL}, 2, 1"); a(f"v_and_b32 v6, 1, {vL}")
    a("v_lshlrev_b32 v20, 5, v4"); a("v_lshl_add_u32 v20, v5, 4, v20"); a("v_lshl_add_u32 v20, v6, 3, v20"); a("v_add_u32 v20, s46, v20")
    a("v_cmp_ne_u32 s[52:53], 0, v4")
    a(f"v_lshrrev_b32 v7, 3, {vC}")
    a("v_lshlrev_b32 v21, 5, v7"); a(f"v_lshl_add_u32 v21, {vG}, 3, v21"); a("v_add_u32 v21, s46, v21")
    a(f"v_bfe_u32 v6, {vL}, 3, 1"); a(f"v_and_b32 v4, 3, {vL}")
    a("v_lshlrev_b32 v22, 6, v5"); a("v_lshl_add_u32 v22, v6, 5, v22"); a("v_lshl_add_u32 v22, v4, 3, v22"); a("v_add_u32 v22, s46, v22")
    a("v_cmp_ne_u32 s[54:55], 0, v5")
    a("v_lshlrev_b32 v23, 6, v7"); a(f"v_lshl_add_u32 v23, {vG}, 4, v23"); a("v_add_u32 v23, s46, v23")
    a(f"s_lshl_b32 s47, s32, 10"); a(f"s_add_u32 s48, s47, {WS_HF}"); a(f"s_add_u32 s49, s47, {WS_H4}")
    a(f"v_lshrrev_b32 v24, 3, {vL}"); a("v_lshlrev_b32 v24, 14, v24"); a(f"v_and_b32 v4, 7, {vL}"); a("v_lshl_add_u32 v24, v4, 4, v24")
    a("s_sub_u32 s50, s2, 128"); a("s_lshl_b32 s50, s50, 7"); a(f"s_add_u32 s50, s50, {WS_H5}")
    a(f"s_add_u32 s51, s50, {4*8*16384}")
    a(f"s_lshl_b32 s47, {sWV}, 17"); a("s_add_u32 s50, s50, s47")
    a("s_waitcnt lgkmcnt(0)")
    a("v_cndmask_b32 v25, v18, v19, s[52:53]")
    a("v_cndmask_b32 v26, v16, v17, s[54:55]")
    AP5 = 72; ACC = 136; ACC2 = 140
    for r in range(8): a(f"v_mov_b32 v{ACC+r}, 0")
    a(f"v_mov_b32 v147, {sTag}"); a(f"v_mov_b32 v151, {sTag}")
    a(f"s_cmp_ge_u32 {sH}, 27")
    a("s_cbranch_scc1 L_A_noffn")
    poll([(8, "v30", "s48", 0)], dual="s48")
    stamp(6)
    unpack24(8)
    xg_reduce_multi("v_add_f32", ["v8", "v9", "v10", "v11"], ["v12", "v13", "v14", "v15"])
    for r in range(4): a(f"v_mov_b32_dpp v{12+r}, v{8+r} row_ror:8 row_mask:0xf bank_mask:0xf")
    a(f"s_mov_b32 s47, {f32(-math.log2(math.e))}")
    for r in range(4): a(f"v_mul_f32 v{16+r}, s47, v{8+r}")
    for r in range(4): a(f"v_exp_f32 v{16+r}, v{16+r}")
    for r in range(4): a(f"v_add_f32 v{16+r}, 1.0, v{16+r}")
    for r in range(4): a(f"v_rcp_f32 v{16+r}, v{16+r}")
    for r in range(4): a(f"v_mul_f32 v{8+r}, v{8+r}, v{12+r}")
    for r in range(4): a(f"v_mul_f32 v{16+r}, v{16+r}, v25")
    for r in range(4): a(f"v_mul_f32 v{8+r}, v{8+r}, v{16+r}")
    a("v_cvt_pk_bf16_f32 v8, v8, v9"); a("v_cvt_pk_bf16_f32 v9, v10, v11")
    a("s_mov_b64 exec, 0xff")
    a("ds_write_b64 v20, v[8:9]")
    a("s_mov_b64 exec, -1")
    a("s_waitcnt lgkmcnt(0)")
    a("ds_read_b64 v[8:9], v21")
    a("s_waitcnt lgkmcnt(0)")
    for t in range(4): diag(AP5 + 4*t, 8 + t//2, t)
    for t in range(4):
        a(f"{MF} v[{ACC}:{ACC+3}], v[{AP5+4*t}:{AP5+4*t+3}], v[{WD+4*t}:{WD+4*t+3}], v[{ACC}:{ACC+3}]")
    a(f"s_cmp_lg_u32 {sWV}, 0")
    a("s_cbranch_scc1 L_A_noffn")
    for t in range(4):
        a(f"{MF} v[{ACC2}:{ACC2+3}], v[{AP5+4*t}:{AP5+4*t+3}], a[{WD2+4*t}:{WD2+4*t+3}], v[{ACC2}:{ACC2+3}]")
    a.label("L_A_noffn")
    poll([(8, "v30", "s49", 0)], dual="s49")
    stamp(7)
    unpack24(8)
    xg_reduce_multi("v_add_f32", ["v8", "v9", "v10", "v11"], ["v12", "v13", "v14", "v15"])
    for r in range(4): a(f"v_mul_f32 v{8+r}, v{8+r}, v26")
    a("v_cvt_pk_bf16_f32 v8, v8, v9"); a("v_cvt_pk_bf16_f32 v9, v10, v11")
    a("s_mov_b64 exec, 0xffff")
    a("ds_write_b64 v22, v[8:9] offset:64")
    a("s_mov_b64 exec, -1")
    a("s_waitcnt lgkmcnt(0)")
    a("ds_read_b128 v[8:11], v23 offset:64")
    a("s_waitcnt lgkmcnt(0)")
    diag(AP5, 8, 0); diag(AP5 + 4, 8, 1)
    for t in range(8):
        if t + 2 < 8: diag(AP5 + 4*(t+2), 8 + (t+2)//2, t+2)
        a(f"{MF} v[{ACC}:{ACC+3}], v[{AP5+4*t}:{AP5+4*t+3}], v[{WO+4*t}:{WO+4*t+3}], v[{ACC}:{ACC+3}]")
    a(f"s_cmp_lg_u32 {sWV}, 0")
    a("s_cbranch_scc1 L_A_st1")
    for t in range(8):
        a(f"{MF} v[{ACC2}:{ACC2+3}], v[{AP5+4*t}:{AP5+4*t+3}], a[{WO2+4*t}:{WO2+4*t+3}], v[{ACC2}:{ACC2+3}]")
    pack24(144, ACC)
    a(f"buffer_store_dwordx4 v[144:147], v24, {WS}, s50 offen sc1")
    pack24(148, ACC2)
    a(f"buffer_store_dwordx4 v[148:151], v24, {WS}, s51 offen sc1")
    a("s_branch L_A_done")
    a.label("L_A_st1")
    a("s_nop 6")
    pack24(144, ACC)
    a(f"buffer_store_dwordx4 v[144:147], v24, {WS}, s50 offen sc1")
    a.label("L_A_done")
    stamp(8)

    a.label("L_fin")
    if profile and opts.get('dbg', 0):
        stamp(10)
        a("s_load_dwordx2 s[40:41], s[0:1], 96")
        a("s_mov_b32 s42, 256"); a("s_mov_b32 s43, 0x00020000")
        a("s_waitcnt lgkmcnt(0)")
        a("s_mov_b64 exec, 1")
        a("v_mov_b32 v4, 0")
        a(f"s_cmp_lg_u32 {sWV}, 0"); a("s_cbranch_scc1 L_end")
        a("s_cmp_lg_u32 s2, 0"); a("s_cbranch_scc1 L_dbgA")
        for k, i in enumerate([0, 1, 2, 3, 4, 5, 7, 8, 9, 10]):
            a(f"v_mov_b32 v5, s{78+2*i}")
            a(f"buffer_store_dword v5, v4, s[40:43], 0 offen offset:{4*k}")
        a("s_branch L_end")
        a.label("L_dbgA")
        a("s_cmp_lg_u32 s2, 129"); a("s_cbranch_scc1 L_end")
        for k, i in enumerate([0, 1, 2, 5, 7, 8]):
            a(f"v_mov_b32 v5, s{78+2*i}")
            a(f"buffer_store_dword v5, v4, s[40:43], 0 offen offset:{40+4*k}")
    elif profile:
        stamp(10)
        a("s_waitcnt lgkmcnt(0)")
        a("s_mov_b64 exec, 1")
        a(f"s_lshl_b32 s40, s2, 2"); a(f"s_add_u32 s40, s40, {sWV}"); a("s_lshl_b32 s40, s40, 6"); a(f"s_add_u32 s40, s40, {WS_STAMP}")
        a("v_mov_b32 v4, 0")
        for i in range(11):
            a(f"v_mov_b32 v5, s{78+2*i}")
            a(f"buffer_store_dword v5, v4, {WS}, s40 offen offset:{4*i}")
    a.label("L_end")
    a("s_endpgm")
    a.label("L_code_end")
    a(f".fill ({CODE_PAD} - (L_code_end - {K})) / 4, 4, 0xBF810000")
    body = a.finish()
    tail = f""".section .rodata,"a"
.p2align 6
.amdhsa_kernel {K}
  .amdhsa_next_free_vgpr 512
  .amdhsa_next_free_sgpr 102
  .amdhsa_accum_offset 256
  .amdhsa_group_segment_fixed_size 0
  .amdhsa_kernarg_size 112
  .amdhsa_user_sgpr_count 2
  .amdhsa_user_sgpr_kernarg_segment_ptr 1
  .amdhsa_system_sgpr_workgroup_id_x 1
.end_amdhsa_kernel
"""
    return HEADER + f"; @launch grid=(256,1,1) block=(256,1,1) lds={LDS_BYTES}\n" + body + tail

if __name__ == "__main__":
    prof = len(sys.argv) > 2 and sys.argv[2] == "prof"
    opts = dict((kv.split("=")[0], int(kv.split("=")[1])) for kv in sys.argv[3:])
    open(sys.argv[1], "w").write(gen(prof, opts))
```
